```python
import torch

def _softmax(x, axis=-1):
    return torch.softmax(x, dim=axis)
def _gelu(x):
    return torch.nn.functional.gelu(x, approximate="tanh")
def _silu(x):
    return torch.nn.functional.silu(x)
def _sigmoid(x):
    return torch.sigmoid(x)
def _layernorm(x, axis=-1, eps=1e-5):
    m = x.mean(dim=axis, keepdim=True)
    v = x.var(dim=axis, keepdim=True, unbiased=False)
    return (x - m) / torch.sqrt(v + eps)
def _scatter_add(tgt, idx, src, axis=0):
    return tgt.clone().index_add_(axis, idx, src)
def _segment_sum(src, seg, n):
    out = torch.zeros((n,) + src.shape[1:], dtype=src.dtype)
    return out.index_add_(0, seg, src)
def _pad(x, pw):
    flat = tuple(v for pair in reversed(pw) for v in pair)
    return torch.nn.functional.pad(x, flat)

kernel_name = 'recurrent_scan__gqa_block_cached__glu_gated_bilinear__decode'

def setup_inputs():

    _w = (lambda a: (lambda t: t.to(torch.bfloat16) if t.is_floating_point() else t)(torch.as_tensor(a)))
    def _A_setup():
        B, Sq, D = 8, 1, 448
        Hq, Hkv, Sk, Dh = 16, 8, 8192, 256
        assert Hq % Hkv == 0, (Hq, Hkv)
        return {
            "x": _w((lambda *s: torch.randn(*s, dtype=torch.bfloat16) * 0.4)(B, Sq, D)),
            "k_cache": _w((lambda *s: torch.randn(*s, dtype=torch.bfloat16) * 1.6)(B, Hkv, Sk, Dh)),
            "v_cache": _w((lambda *s: torch.randn(*s, dtype=torch.bfloat16) * 1.6)(B, Hkv, Sk, Dh)),
            "wq": _w((lambda *s: torch.randn(*s, dtype=torch.bfloat16) * 1.6)(D, Hq * Dh) * (D ** -0.5)),
            "wo": _w((lambda *s: torch.randn(*s, dtype=torch.bfloat16) * 1.6)(Hq * Dh, D) * ((Hq * Dh) ** -0.5)),
        }
    _A_in = _A_setup()

    def _B_setup():
        B, S, D, F = 8, 1, 448, 1792
        return {
            "x": _w((lambda *s: torch.randn(*s, dtype=torch.bfloat16) * 0.4)(B, S, D)),
            "w_gate": _w((lambda *s: torch.randn(*s, dtype=torch.bfloat16) * 1.6)(D, F) * (D ** -0.5)),
            "w_up": _w((lambda *s: torch.randn(*s, dtype=torch.bfloat16) * 1.6)(D, F) * (D ** -0.5)),
            "w_down": _w((lambda *s: torch.randn(*s, dtype=torch.bfloat16) * 1.6)(F, D) * (F ** -0.5)),
        }
    _B_in = _B_setup()

    return {
        "A_x": _A_in["x"],
        "A_k_cache": _A_in["k_cache"],
        "A_v_cache": _A_in["v_cache"],
        "A_wq": _A_in["wq"],
        "A_wo": _A_in["wo"],
        "B_x": _B_in["x"],
        "B_w_gate": _B_in["w_gate"],
        "B_w_up": _B_in["w_up"],
        "B_w_down": _B_in["w_down"],
    }

def reference(A_x, A_k_cache, A_v_cache, A_wq, A_wo, B_x, B_w_gate, B_w_up, B_w_down):
    def _A_ref(x, k_cache, v_cache, wq, wo):
        B, Sq, D = x.shape
        Hq, Dh = 16, 256
        Hkv = k_cache.shape[1]
        rep = Hq // Hkv
        q = (lambda x, *d: x.permute(*d))((x @ wq).reshape(B, Sq, Hq, Dh), 0, 2, 1, 3)
        k = (lambda x, n, axis: torch.repeat_interleave(x, n, dim=axis))(k_cache, rep, axis=1)
        v = (lambda x, n, axis: torch.repeat_interleave(x, n, dim=axis))(v_cache, rep, axis=1)
        scores = torch.einsum("bhqd,bhkd->bhqk", q, k) * (Dh ** -0.5)
        p = _softmax(scores, axis=-1)
        o = torch.einsum("bhqk,bhkd->bhqd", p, v)
        return (lambda x, *d: x.permute(*d))(o, 0, 2, 1, 3).reshape(B, Sq, Hq * Dh) @ wo

    def _B_ref(x, w_gate, w_up, w_down):
        g = torch.einsum("bsd,df->bsf", x, w_gate)
        u = torch.einsum("bsd,df->bsf", x, w_up)
        h = g * u
        return torch.einsum("bsf,fd->bsd", h, w_down)

    x = A_x
    xn = _layernorm(x, axis=-1)
    s = _A_ref(xn, A_k_cache, A_v_cache, A_wq, A_wo)
    g = _silu(_B_ref(xn, B_w_gate, B_w_up, B_w_down))
    return x + s * g
```

```python
import sys, struct
NAME = "recurrent_scan__gqa_block_cached__glu_gated_bilinear__decode"
def f2u(x): return struct.unpack('<I', struct.pack('<f', x))[0]
CSC = f2u(0.0625*1.4426950408889634)
W_Q, W_H, W_Y, W_S, W_P, W_ML, W_TS, W_END = 0x1000, 0x21000, 0x30000, 0xA0000, 0x180000, 0x280000, 0x290000, 0x300000
L_XN, XNS = 0, 912
L_Q = 7424
L_O = 8448
L_ML = 16640
L_A, AS = 16704, 272
LDS = 18944
DPPA = "row_mask:0xf bank_mask:0xf"
SPIN = 20000

class G:
    def __init__(s, opt): s.L=[]; s.o=opt; s.n=0
    def __call__(s, t):
        for ln in t.split("\n"):
            ln=ln.strip()
            if ln: s.L.append(ln if ln.endswith(":") else "  "+ln)
    def lab(s, p): s.n+=1; return f"L_{p}_{s.n}"
    def ts(s, k):
        if s.o.get('ts'): s(f"s_memrealtime s[{80+2*k}:{81+2*k}]")
    def tsdump(s):
        if not s.o.get('ts'): return
        s("s_waitcnt lgkmcnt(0)\ns_mov_b64 exec, 1")
        for k in range(8): s(f"v_mov_b32 v{8+k}, s{80+2*k}")
        s(f"s_mul_i32 s40, s2, 5\ns_add_u32 s40, s40, s3\ns_lshl_b32 s40, s40, 5\ns_add_u32 s40, s40, {W_TS}\nv_mov_b32 v7, 0")
        s("buffer_store_dwordx4 v[8:11], v7, s[12:15], s40 offen\nbuffer_store_dwordx4 v[12:15], v7, s[12:15], s40 offen offset:16")

def r(b, n): return f"v[{b}:{b+n-1}]"

def red_g(g, op, v, t):
    g(f"""v_mov_b32 v{t}, v{v}
    s_nop 1
    v_permlane32_swap_b32 v{v}, v{t}
    s_nop 0
    {op} v{v}, v{v}, v{t}
    v_mov_b32 v{t}, v{v}
    s_nop 1
    v_permlane16_swap_b32 v{v}, v{t}
    s_nop 0
    {op} v{v}, v{v}, v{t}""")

def spin_begin(g, p):
    l=g.lab(p); g(f"s_mov_b32 s41, {SPIN}\n{l}:"); return l
def spin_end(g, l, sleep):
    d=g.lab("dn")
    g(f"""s_cbranch_vccz {d}
    s_sub_u32 s41, s41, 1
    s_cmp_eq_u32 s41, 0
    s_cbranch_scc1 {d}
    s_sleep {sleep}
    s_branch {l}
    {d}:""")
def tagchk(g, regs, t):
    g(f"v_xor_b32 v{t}, s33, v{regs[0]}")
    for x in regs[1:]: g(f"v_xor_b32 v{t+1}, s33, v{x}\nv_or_b32 v{t}, v{t}, v{t+1}")
    g(f"v_cmp_ne_u32 vcc, 0, v{t}\ns_nop 4")

def srd(g, d, p, size): g(f"s_mov_b32 s{d}, s{p}\ns_mov_b32 s{d+1}, s{p+1}\ns_mov_b32 s{d+2}, {size}\ns_mov_b32 s{d+3}, 0x20000")

VK, VV, VQ, KB, S0, ACC, VM, VL, T0, PA, PB = 2, 3, 8, 40, 168, 172, 180, 181, 182, 192, 208
def kbuf(s): return KB+64*s
def vbuf(s): return KB+64*s+32
def ldK(g, s):
    for j in range(8): g(f"buffer_load_dwordx4 {r(kbuf(s)+4*j,4)}, v{VK}, s[4:7], 0 offen offset:{64*j} nt")
    g(f"v_add_u32 v{VK}, 0x8000, v{VK}")
def ldV(g, s):
    for j in range(8): g(f"buffer_load_dwordx4 {r(vbuf(s)+4*j,4)}, v{VV}, s[8:11], 0 offen offset:{256*j} nt")
    g(f"v_add_u32 v{VV}, 0x8000, v{VV}")
def step(g, s, wk, wv, refill):
    g(f"s_waitcnt vmcnt({wk})")
    for j in range(8): g(f"v_mfma_f32_16x16x32_bf16 {r(S0,4)}, {r(kbuf(s)+4*j,4)}, {r(VQ+4*j,4)}, {'0' if j==0 else r(S0,4)}")
    if refill: ldK(g, s)
    g("s_nop 7")
    t=T0
    g(f"""v_cvt_pk_bf16_f32 v{t}, v{S0}, v{S0+1}
    v_cvt_pk_bf16_f32 v{t+1}, v{S0+2}, v{S0+3}
    v_lshlrev_b32 v{S0}, 16, v{t}
    v_and_b32 v{S0+1}, 0xffff0000, v{t}
    v_lshlrev_b32 v{S0+2}, 16, v{t+1}
    v_and_b32 v{S0+3}, 0xffff0000, v{t+1}
    v_max3_f32 v{t}, v{S0}, v{S0+1}, v{S0+2}
    v_max3_f32 v{t}, v{t}, v{S0+3}, v{VM}""")
    red_g(g, "v_max_f32", t, t+1)
    g(f"""v_sub_f32 v{t+1}, v{VM}, v{t}
    v_mul_f32 v{t+2}, s35, v{t}
    v_mul_f32 v{t+1}, s35, v{t+1}
    v_mov_b32 v{VM}, v{t}
    v_exp_f32 v{t+1}, v{t+1}""")
    for k in range(4): g(f"v_fma_f32 v{S0+k}, v{S0+k}, s35, -v{t+2}")
    for k in range(4): g(f"v_exp_f32 v{S0+k}, v{S0+k}")
    for k in range(8): g(f"v_mul_f32_dpp v{ACC+k}, v{t+1}, v{ACC+k} quad_perm:[{','.join([str(k&2)]*4)}] {DPPA}")
    g(f"""v_cvt_pk_bf16_f32 v{t+2}, v{S0}, v{S0+1}
    v_cvt_pk_bf16_f32 v{t+3}, v{S0+2}, v{S0+3}
    v_fma_f32 v{VL}, v{VL}, v{t+1}, v{S0}
    v_add_f32 v{S0+1}, v{S0+1}, v{S0+2}
    v_add_f32 v{VL}, v{VL}, v{S0+3}
    v_add_f32 v{VL}, v{VL}, v{S0+1}""")
    for e in range(8): g(f"v_cndmask_b32 v{PA+2*e}, 0, v{t+2}, s[{48+2*e}:{49+2*e}]\nv_cndmask_b32 v{PA+2*e+1}, 0, v{t+3}, s[{48+2*e}:{49+2*e}]")
    g(f"s_waitcnt vmcnt({wv})")
    V=vbuf(s)
    def vreg(j,a,d): return V+4*(2*j+a)+d
    def perm(n):
        a,e=n>>3,n&7; b=PB+2*(n&3); sel=36+(e&1)
        g(f"v_perm_b32 v{b}, v{vreg(1,a,e>>1)}, v{vreg(0,a,e>>1)}, s{sel}\nv_perm_b32 v{b+1}, v{vreg(3,a,e>>1)}, v{vreg(2,a,e>>1)}, s{sel}")
    perm(0); perm(1)
    for n in range(16):
        if n+2<16: perm(n+2)
        a,e=n>>3,n&7
        g(f"v_mfma_f32_16x16x16_bf16 {r(ACC+4*a,4)}, {r(PA+2*e,2)}, {r(PB+2*(n&3),2)}, {r(ACC+4*a,4)}")
    if refill:
        ldV(g, s)

def stream(g):
    o=g.o
    g(f"""s_sub_u32 s32, s3, 1
    s_lshl_b32 s4, s2, 20
    s_add_u32 s8, s20, s4
    s_addc_u32 s9, s21, 0
    s_add_u32 s4, s18, s4
    s_addc_u32 s5, s19, 0
    s_mov_b32 s6, 0x100000
    s_mov_b32 s7, 0x20000
    s_mov_b32 s10, 0x100000
    s_mov_b32 s11, 0x20000""")
    srd(g, 44, 16, 7168)
    g(f"""v_and_b32 v4, 15, v1
    v_lshrrev_b32 v5, 4, v1
    v_lshlrev_b32 v{VK}, 9, v4
    v_lshl_add_u32 v{VK}, v5, 4, v{VK}
    v_lshlrev_b32 v{VV}, 11, v5
    v_lshl_add_u32 v{VV}, v4, 4, v{VV}
    v_lshrrev_b32 v6, 5, v1
    v_lshl_add_u32 v6, s32, 1, v6
    v_and_b32 v7, 31, v1
    v_mul_u32_u24 v{T0}, 896, v6
    v_lshl_add_u32 v{T0}, v7, 2, v{T0}
    s_lshl_b32 s34, s32, 13
    v_add_u32 v{VK}, s34, v{VK}
    v_add_u32 v{VV}, s34, v{VV}""")
    X=PA
    for n in range(7): g(f"buffer_load_dword v{X+n}, v{T0}, s[44:47], 0 offen offset:{128*n}")
    for s in range(2):
        ldK(g,s); ldV(g,s)
    g.ts(1)
    g(f"s_mov_b32 s35, {CSC}\ns_mov_b32 s36, 0x05040100\ns_mov_b32 s37, 0x07060302")
    for e in range(8):
        m=0
        for i in range(16):
            if (i&1)+2*(i>>2)==e: m|=1<<i
        m|=m<<16
        g(f"s_mov_b32 s{48+2*e}, {m:#x}\ns_mov_b32 s{49+2*e}, {m:#x}")
    g(f"v_mul_u32_u24 v{T0+1}, {XNS}, v6\nv_lshl_add_u32 v{T0+1}, v7, 2, v{T0+1}")
    for k in range(8): g(f"v_mov_b32 v{ACC+k}, 0")
    g(f"v_mov_b32 v{VM}, 0xff800000\nv_mov_b32 v{VL}, 0")
    F=VQ; t=T0+2
    def red32(v):
        for c in ("quad_perm:[1,0,3,2]","quad_perm:[2,3,0,1]","row_ror:4","row_ror:8"): g(f"s_nop 1\nv_add_f32_dpp v{v}, v{v}, v{v} {c} {DPPA}")
        g(f"v_mov_b32 v{t+5}, v{v}\ns_nop 1\nv_permlane16_swap_b32 v{v}, v{t+5}\ns_nop 0\nv_add_f32 v{v}, v{v}, v{t+5}")
    def rbf(v): g(f"v_cvt_pk_bf16_f32 v{v}, v{v}, v{v}\nv_lshlrev_b32 v{v}, 16, v{v}")
    g("s_waitcnt vmcnt(32)")
    for n in range(7): g(f"v_lshlrev_b32 v{F+2*n}, 16, v{X+n}\nv_and_b32 v{F+2*n+1}, 0xffff0000, v{X+n}")
    g(f"v_add_f32 v{t}, v{F}, v{F+1}")
    for k in range(2,14): g(f"v_add_f32 v{t}, v{t}, v{F+k}")
    red32(t)
    g(f"v_mul_f32 v{t}, {f2u(1/448):#x}, v{t}\nv_mov_b32 v{t+1}, 0")
    for k in range(14): g(f"v_sub_f32 v{t+2}, v{F+k}, v{t}\nv_fmac_f32 v{t+1}, v{t+2}, v{t+2}")
    red32(t+1)
    g(f"v_mul_f32 v{t+1}, {f2u(1/448):#x}, v{t+1}")
    rbf(t); rbf(t+1)
    g(f"v_add_f32 v{t+1}, {f2u(1e-5):#x}, v{t+1}"); rbf(t+1)
    g(f"v_sqrt_f32 v{t+1}, v{t+1}\ns_nop 0"); rbf(t+1)
    g(f"v_rcp_f32 v{t+2}, v{t+1}")
    for k in range(14): g(f"v_sub_f32 v{F+k}, v{F+k}, v{t}")
    for n in range(7): g(f"v_cvt_pk_bf16_f32 v{X+n}, v{F+2*n}, v{F+2*n+1}\nv_lshlrev_b32 v{F+2*n}, 16, v{X+n}\nv_and_b32 v{F+2*n+1}, 0xffff0000, v{X+n}")
    for k in range(14): g(f"v_mul_f32 v{t+3}, v{F+k}, v{t+2}\nv_fma_f32 v{F+k}, -v{t+3}, v{t+1}, v{F+k}\nv_fma_f32 v{F+k}, v{F+k}, v{t+2}, v{t+3}")
    for n in range(7): g(f"v_cvt_pk_bf16_f32 v{X+n}, v{F+2*n}, v{F+2*n+1}\nds_write_b32 v{T0+1}, v{X+n} offset:{L_XN+128*n}")
    g("s_waitcnt lgkmcnt(0)\ns_barrier")
    g(f"""v_bfe_u32 v{T0}, v1, 1, 1
    v_lshlrev_b32 v{T0}, 9, v{T0}
    v_lshl_add_u32 v{T0}, v5, 4, v{T0}
    s_barrier""")
    g.ts(2)
    for j in range(8): g(f"ds_read_b128 {r(VQ+4*j,4)}, v{T0} offset:{L_Q+64*j}")
    g("s_waitcnt lgkmcnt(0)")
    if o.get('mode','2')=='2':
        g("s_mov_b32 s38, 16\nL_loop:")
        step(g,0,24,24,True); step(g,1,24,24,True)
    else:
        step(g,0,24,24,True); step(g,1,24,16,False)
        g("s_mov_b32 s38, 30\nL_loop:")
        step(g,0,8,8,True)
    g("s_sub_u32 s38, s38, 1\ns_cmp_lg_u32 s38, 0\ns_cbranch_scc1 L_loop")
    g.ts(3)
    red_g(g, "v_add_f32", VL, T0)
    g(f"""s_lshl_b32 s38, s32, 11
    v_lshl_add_u32 v{T0}, v1, 4, s38
    v_and_b32 v{T0+1}, 2, v1
    v_lshlrev_b32 v{T0+1}, 2, v{T0+1}
    v_lshl_add_u32 v{T0+1}, s32, 4, v{T0+1}
    ds_write_b128 v{T0}, {r(ACC,4)} offset:{L_O}
    ds_write_b128 v{T0}, {r(ACC+4,4)} offset:{L_O+1024}
    ds_write_b64 v{T0+1}, {r(VM,2)} offset:{L_ML}
    s_lshr_b32 s38, s32, 1
    s_and_b32 s39, s32, 1
    s_lshl_b32 s40, s38, 10
    s_lshl_b32 s42, s39, 3
    s_add_u32 s40, s40, s42
    v_lshl_add_u32 v{T0}, v1, 4, s40
    v_mov_b32 v{T0+1}, s42
    s_lshr_b32 s40, s2, 2
    s_and_b32 s40, s40, 7
    s_lshl_b32 s40, s40, 1
    s_add_u32 s40, s40, s39          ; hq
    s_lshr_b32 s42, s2, 5
    s_lshl_b32 s42, s42, 2
    s_and_b32 s43, s2, 3
    s_add_u32 s42, s42, s43          ; b*4+p
    s_lshl_b32 s43, s40, 5
    s_add_u32 s43, s43, s42
    s_lshl_b32 s43, s43, 4
    s_add_u32 s43, s43, {W_ML}
    s_lshl_b32 s40, s40, 1
    s_add_u32 s40, s40, s38
    s_lshl_b32 s40, s40, 5
    s_add_u32 s40, s40, s42
    s_lshl_b32 s40, s40, 10
    s_add_u32 s40, s40, {W_P}        ; P slot
    v_lshlrev_b32 v4, 4, v1
    s_waitcnt lgkmcnt(0)
    s_barrier""")
    for w in range(4): g(f"ds_read_b64 {r(8+2*w,2)}, v{T0+1} offset:{L_ML+16*w}")
    for w in range(4): g(f"ds_read_b64 {r(16+2*w,2)}, v{T0} offset:{L_O+2048*w}")
    g("s_waitcnt lgkmcnt(4)\nv_max3_f32 v28, v8, v10, v12\nv_max_f32 v28, v28, v14\nv_mov_b32 v25, s33\nv_mov_b32 v27, s33\nv_mov_b32 v29, s33\nv_mov_b32 v31, s33")
    for w in range(4): g(f"v_sub_f32 v{8+2*w}, v{8+2*w}, v28\nv_mul_f32 v{8+2*w}, s35, v{8+2*w}\nv_exp_f32 v{8+2*w}, v{8+2*w}")
    g("s_waitcnt lgkmcnt(0)\nv_mul_f32 v24, v8, v16\nv_mul_f32 v26, v8, v17\nv_mul_f32 v30, v8, v9")
    for w in range(1,4): g(f"v_fmac_f32 v24, v{8+2*w}, v{16+2*w}\nv_fmac_f32 v26, v{8+2*w}, v{17+2*w}\nv_fmac_f32 v30, v{8+2*w}, v{9+2*w}")
    g(f"""buffer_store_dwordx4 v[24:27], v4, s[12:15], s40 offen sc1
    s_cmp_lg_u32 s38, 0
    s_cbranch_scc1 L_noml
    s_mov_b64 exec, 1
    buffer_store_dwordx4 v[28:31], v4, s[12:15], s43 offen sc1
    s_mov_b64 exec, -1
    L_noml:""")
    g.ts(4)
    g(f"""s_cmp_ge_u32 s2, 224
    s_cbranch_scc1 L_send
    s_mul_i32 s38, s2, 9363
    s_lshr_b32 s38, s38, 16          ; ks = w/7
    s_lshr_b32 s39, s38, 1
    s_lshl_b32 s39, s39, 9
    s_lshl_b32 s40, s32, 7
    s_add_u32 s39, s39, s40
    s_add_u32 s39, s39, {W_ML}
    s_lshl_b32 s38, s38, 15
    s_lshl_b32 s40, s32, 13
    s_add_u32 s38, s38, s40
    s_add_u32 s38, s38, {W_P}
    s_add_u32 s40, s38, 4096
    v_and_b32 v5, 7, v1
    v_lshlrev_b32 v5, 4, v5""")
    l=spin_begin(g,"ml")
    g("buffer_load_dwordx4 v[8:11], v5, s[12:15], s39 offen sc1\ns_waitcnt vmcnt(0)")
    tagchk(g,[9,11],6); spin_end(g,l,o.get('sl_ml',2))
    g.ts(5)
    l=spin_begin(g,"pd")
    for n in range(8): g(f"buffer_load_dwordx4 {r(40+4*n,4)}, v4, s[12:15], s{38 if n<4 else 40} offen offset:{1024*(n&3)} sc1")
    g(f"""v_max_f32_dpp v12, v8, v8 quad_perm:[1,0,3,2] {DPPA}
    s_nop 1
    v_max_f32_dpp v12, v12, v12 quad_perm:[2,3,0,1] {DPPA}
    v_sub_f32 v12, v8, v12
    v_mul_f32 v12, s35, v12
    v_exp_f32 v12, v12
    s_nop 0
    v_mul_f32 v13, v12, v10
    s_nop 1
    v_add_f32_dpp v13, v13, v13 quad_perm:[1,0,3,2] {DPPA}
    s_nop 1
    v_add_f32_dpp v13, v13, v13 quad_perm:[2,3,0,1] {DPPA}
    v_rcp_f32 v13, v13
    s_nop 0
    v_mul_f32 v12, v12, v13
    s_nop 0""")
    for n in range(8): g(f"v_readlane_b32 s{48+n}, v12, {n}")
    g("s_waitcnt vmcnt(0)")
    tagchk(g,[41+2*k for k in range(16)],6); spin_end(g,l,0)
    for b in range(2):
        g(f"v_mul_f32 v{16+2*b}, s{48+4*b}, v{40+16*b}\nv_mul_f32 v{17+2*b}, s{48+4*b}, v{42+16*b}")
        for p in range(1,4): g(f"v_fmac_f32 v{16+2*b}, s{48+4*b+p}, v{40+16*b+4*p}\nv_fmac_f32 v{17+2*b}, s{48+4*b+p}, v{42+16*b+4*p}")
    g(f"""s_mul_i32 s38, s32, {2*AS}
    v_lshl_add_u32 v5, v1, 2, s38
    v_cvt_pk_bf16_f32 v16, v16, v17
    v_cvt_pk_bf16_f32 v18, v18, v19
    ds_write_b32 v5, v16 offset:{L_A}
    ds_write_b32 v5, v18 offset:{L_A+AS}
    s_waitcnt lgkmcnt(0)
    s_barrier
    L_send:""")
    g.ts(6); g.tsdump()
    g("s_endpgm")

XA, RW, BT, D0, D1, BW = 8, 40, 104, 112, 120, 136
def proj_loads(g, sr, rowb):
    for s in range(7):
        for j in range(8):
            g(f"s_mov_b32 s40, {(64*s+j)*rowb}\nbuffer_load_dword v{RW+8*s+j}, v2, s[{sr}:{sr+3}], s40 offen")
def proj_mma(g, D):
    for s in range(7):
        g(f"s_waitcnt vmcnt({8*(6-s)})")
        for e in range(2):
            for k in range(4): g(f"v_perm_b32 v{BT+4*e+k}, v{RW+8*s+2*k+1}, v{RW+8*s+2*k}, s{36+e}")
        g("s_nop 0")
        for e in range(2): g(f"v_mfma_f32_16x16x32_bf16 {r(D+4*e,4)}, {r(XA+4*s,4)}, {r(BT+4*e,4)}, {'0' if s==0 else r(D+4*e,4)}")
    g("s_nop 7")
    for k in range(8): g(f"ds_bpermute_b32 v{BT+k}, v3, v{D+k}")
    g("s_waitcnt lgkmcnt(0)")
    for k in range(8): g(f"v_add_f32 v{D+k}, v{D+k}, v{BT+k}")
def wslice_loads(g, sr, perm):
    for t in range(4):
        for j in range(8):
            row = (8*(j>>1)+2*t+(j&1)) if perm else (32*t+j)
            g(f"s_add_u32 s40, s42, {row*896}\nbuffer_load_dwordx2 {r(RW+16*t+2*j,2)}, v2, s[{sr}:{sr+3}], s40 offen")
def wslice_perm(g):
    for t in range(4):
        for e in range(4):
            for k in range(4): g(f"v_perm_b32 v{BW+16*t+4*e+k}, v{RW+16*t+4*k+2+(e>>1)}, v{RW+16*t+4*k+(e>>1)}, s{36+(e&1)}")
def wslice_mma_store(g, A, jobb):
    for t in range(4):
        for e in range(4): g(f"v_mfma_f32_16x16x32_bf16 {r(D0+4*e,4)}, {r(A+4*t,4)}, {r(BW+16*t+4*e,4)}, {'0' if t==0 else r(D0+4*e,4)}")
    g("s_mov_b32 vcc_lo, 0\ns_mov_b32 vcc_hi, -1")
    for q in range(4): g(f"v_mov_b32 v{RW+4*q+1}, s33\nv_mov_b32 v{RW+4*q+3}, s33")
    for q in range(4):
        g(f"""v_cndmask_b32 v{RW+4*q}, v{D0+q}, v{D0+8+q}, vcc
        v_cndmask_b32 v{RW+4*q+2}, v{D0+4+q}, v{D0+12+q}, vcc
        s_add_u32 s40, s43, {q*28*jobb}
        buffer_store_dwordx4 {r(RW+4*q,4)}, v6, s[12:15], s40 offen sc1""")
def joboff(g, jobb):
    g(f"""v_and_b32 v6, 1, v5
    v_mul_u32_u24 v6, 112, v6
    v_lshrrev_b32 v7, 2, v4
    v_add_u32 v6, v6, v7
    v_mul_u32_u24 v6, {jobb}, v6
    v_and_b32 v7, 3, v4
    v_lshl_add_u32 v6, v7, 5, v6
    v_lshrrev_b32 v7, 1, v5
    v_lshl_add_u32 v6, v7, 4, v6""")
def red8(g, v, t):
    g(f"s_nop 1\nv_add_f32_dpp v{v}, v{v}, v{v} row_ror:8 {DPPA}"); red_g(g,"v_add_f32",v,t)

def helper(g):
    o=g.o
    g("s_setprio 3")
    srd(g, 4, 22, 448*8192)
    g(f"""s_lshr_b32 s32, s2, 5
    s_lshl_b32 s32, s32, 5
    s_and_b32 s38, s2, 7
    s_lshl_b32 s38, s38, 2
    s_add_u32 s32, s32, s38
    s_bfe_u32 s38, s2, 0x20003
    s_add_u32 s32, s32, s38          ; cb
    v_and_b32 v4, 15, v1
    v_lshrrev_b32 v5, 4, v1
    v_lshrrev_b32 v6, 3, v4
    v_lshl_add_u32 v6, v6, 2, v5
    v_and_b32 v7, 7, v4
    s_lshl_b32 s38, s32, 5
    v_lshl_add_u32 v36, v7, 2, s38
    v_lshl_add_u32 v2, v6, 16, v36""")
    proj_loads(g, 4, 8192)
    g.ts(1)
    g(f"""s_mov_b32 s36, 0x05040100
    s_mov_b32 s37, 0x07060302
    v_add_u32 v3, 40, v1
    v_lshlrev_b32 v3, 2, v3
    v_mul_u32_u24 v37, {XNS}, v7
    v_lshl_add_u32 v37, v6, 4, v37
    s_barrier""")
    for s in range(7): g(f"ds_read_b128 {r(XA+4*s,4)}, v37 offset:{L_XN+128*s}")
    g("s_waitcnt lgkmcnt(0)")
    g.ts(2)
    proj_mma(g, D0)
    g(f"""v_lshlrev_b32 v38, 16, v5
    v_lshl_add_u32 v38, v4, 3, v38
    s_lshl_b32 s38, s32, 6
    s_add_u32 s38, s38, {W_Q}""")
    for q in range(4): g(f"v_cvt_pk_bf16_f32 v{BT+2*q}, v{D0+q}, v{D0+4+q}\nv_mov_b32 v{BT+2*q+1}, s33")
    g("s_mov_b64 exec, 0x00ff00ff")
    for q in range(4): g(f"s_add_u32 s40, s38, {q*16384}\nbuffer_store_dwordx2 {r(BT+2*q,2)}, v38, s[12:15], s40 offen sc1")
    g(f"""s_mov_b64 exec, -1
    s_lshr_b32 s38, s2, 2
    s_lshl_b32 s38, s38, 11
    s_add_u32 s38, s38, {W_Q}
    v_lshlrev_b32 v39, 4, v1""")
    g.ts(3)
    l=spin_begin(g,"q")
    g(f"buffer_load_dwordx4 {r(RW,4)}, v39, s[12:15], s38 offen sc1\nbuffer_load_dwordx4 {r(RW+4,4)}, v39, s[12:15], s38 offen offset:1024 sc1\ns_waitcnt vmcnt(0)")
    tagchk(g,[RW+1,RW+3,RW+5,RW+7],BT); spin_end(g,l,1)
    g(f"""v_lshlrev_b32 v38, 3, v1
    v_add_u32 v38, {L_Q}, v38
    ds_write2_b32 v38, v{RW}, v{RW+2} offset0:0 offset1:1
    ds_write2_b32 v38, v{RW+4}, v{RW+6} offset0:128 offset1:129
    s_waitcnt lgkmcnt(0)
    s_barrier
    s_setprio 0""")
    g.ts(4)
    g("s_cmp_ge_u32 s32, 112\ns_cbranch_scc1 L_noj2")
    g("v_mul_u32_u24 v2, 28672, v6\nv_add_u32 v2, v2, v36")
    srd(g, 4, 28, 448*3584); proj_loads(g, 4, 3584); proj_mma(g, D0)
    srd(g, 8, 30, 448*3584); proj_loads(g, 8, 3584); proj_mma(g, D1)
    for q in range(4):
        g(f"""v_cvt_pk_bf16_f32 v{BT}, v{D0+q}, v{D0+4+q}
        v_cvt_pk_bf16_f32 v{BT+1}, v{D1+q}, v{D1+4+q}
        v_lshlrev_b32 v{BT+2}, 16, v{BT}
        v_and_b32 v{BT}, 0xffff0000, v{BT}
        v_lshlrev_b32 v{BT+3}, 16, v{BT+1}
        v_and_b32 v{BT+1}, 0xffff0000, v{BT+1}
        v_mul_f32 v{BT+2}, v{BT+2}, v{BT+3}
        v_mul_f32 v{BT}, v{BT}, v{BT+1}
        v_cvt_pk_bf16_f32 v{RW+2*q}, v{BT+2}, v{BT}
        v_mov_b32 v{RW+2*q+1}, s33""")
    g(f"""v_mul_u32_u24 v38, 28672, v5
    v_lshl_add_u32 v38, v4, 3, v38
    s_lshl_b32 s38, s32, 6
    s_add_u32 s38, s38, {W_H}
    s_mov_b64 exec, 0x00ff00ff""")
    for q in range(4): g(f"s_add_u32 s40, s38, {q*7168}\nbuffer_store_dwordx2 {r(RW+2*q,2)}, v38, s[12:15], s40 offen sc1")
    g("s_mov_b64 exec, -1\ns_waitcnt vmcnt(0)\nL_noj2:")
    g(f"""s_sub_u32 s38, s2, 128
    s_cmp_ge_u32 s38, 98
    s_cbranch_scc1 L_noj3
    s_mul_i32 s39, s38, 9363
    s_lshr_b32 s39, s39, 16          ; ks
    s_mul_i32 s40, s39, 7
    s_sub_u32 s38, s38, s40          ; ns
    s_mul_i32 s42, s39, {128*896}
    s_lshl_b32 s40, s38, 7
    s_add_u32 s42, s42, s40
    v_mul_u32_u24 v2, {8*896}, v5
    v_lshl_add_u32 v2, v4, 3, v2""")
    srd(g, 4, 64, 1792*896); wslice_loads(g, 4, False)
    g(f"""s_lshl_b32 s43, s38, 13
    s_lshl_b32 s40, s39, 7
    s_add_u32 s43, s43, s40
    s_add_u32 s43, s43, {W_Y}
    s_lshl_b32 s39, s39, 9
    s_add_u32 s39, s39, {W_H}
    v_and_b32 v7, 7, v4
    v_mul_u32_u24 v38, 7168, v7
    v_lshl_add_u32 v38, v5, 5, v38
    s_waitcnt vmcnt(0)""")
    wslice_perm(g); joboff(g, 2048)
    l=spin_begin(g,"h")
    for n in range(8): g(f"buffer_load_dwordx4 {r(RW+4*n,4)}, v38, s[12:15], s39 offen offset:{128*(n>>1)+16*(n&1)} sc1")
    g("s_waitcnt vmcnt(0)")
    tagchk(g,[RW+1+2*k for k in range(16)],BT); spin_end(g,l,32)
    for k in range(16): g(f"v_mov_b32 v{XA+k}, v{RW+2*k}")
    g("s_nop 1")
    wslice_mma_store(g, XA, 2048)
    g("s_waitcnt vmcnt(0)\nL_noj3:")
    g("s_cmp_ge_u32 s2, 224\ns_cbranch_scc1 L_hend")
    g(f"""s_mul_i32 s39, s2, 9363
    s_lshr_b32 s39, s39, 16          ; ks
    s_mul_i32 s40, s39, 7
    s_sub_u32 s38, s2, s40           ; ns
    s_mul_i32 s42, s39, {128*896}
    s_lshl_b32 s40, s38, 7
    s_add_u32 s42, s42, s40
    v_mul_u32_u24 v2, {32*896}, v5
    v_lshl_add_u32 v2, v4, 3, v2""")
    srd(g, 8, 24, 4096*896); wslice_loads(g, 8, True)
    g(f"""s_lshl_b32 s43, s38, 14
    s_lshl_b32 s40, s39, 7
    s_add_u32 s43, s43, s40
    s_add_u32 s43, s43, {W_S}
    v_and_b32 v7, 7, v1
    s_lshl_b32 s38, s2, 5
    v_lshl_add_u32 v36, v7, 2, s38""")
    srd(g, 44, 16, 7168); srd(g, 48, 66, 7168)
    g(f"buffer_load_dword v37, v36, s[44:47], 0 offen\ns_waitcnt vmcnt(0)")
    wslice_perm(g); joboff(g, 4096)
    g(f"s_lshl_b32 s38, s2, 11\ns_add_u32 s38, s38, {W_Y}\nv_mov_b32 v{RW+4}, 0\nv_mov_b32 v{RW+5}, s33\nv_mov_b32 v{RW+6}, 0\nv_mov_b32 v{RW+7}, s33")
    l=spin_begin(g,"y")
    g(f"""buffer_load_dwordx4 {r(RW,4)}, v39, s[12:15], s38 offen sc1
    s_mov_b32 exec_hi, 0xffff
    buffer_load_dwordx4 {r(RW+4,4)}, v39, s[12:15], s38 offen offset:1024 sc1
    s_mov_b32 exec_hi, -1
    s_waitcnt vmcnt(0)""")
    tagchk(g,[RW+1,RW+3,RW+5,RW+7],BT); spin_end(g,l,64)
    g(f"v_add_f32 v32, v{RW}, v{RW+4}\nv_add_f32 v33, v{RW+2}, v{RW+6}")
    red8(g,32,BT); red8(g,33,BT)
    g(f"v_cvt_pk_bf16_f32 v33, v32, v33\nv_lshlrev_b32 v32, 16, v33\nv_and_b32 v33, 0xffff0000, v33")
    for v in (32,33):
        g(f"""v_mul_f32 v{BT}, {f2u(-1.4426950408889634):#x}, v{v}
        v_exp_f32 v{BT}, v{BT}
        s_nop 0
        v_add_f32 v{BT}, 1.0, v{BT}
        v_rcp_f32 v{BT}, v{BT}
        s_nop 0
        v_mul_f32 v{v}, v{v}, v{BT}""")
    g(f"""v_cvt_pk_bf16_f32 v33, v32, v33
    v_lshlrev_b32 v32, 16, v33
    v_and_b32 v33, 0xffff0000, v33
    v_lshlrev_b32 v34, 16, v37
    v_and_b32 v35, 0xffff0000, v37
    v_and_b32 v7, 7, v1
    v_mul_u32_u24 v38, {AS}, v7
    v_lshl_add_u32 v38, v5, 4, v38
    s_lshl_b32 s38, s2, 12
    s_add_u32 s38, s38, {W_S}""")
    g.ts(5)
    g("s_barrier\ns_barrier")
    for t in range(4): g(f"ds_read_b128 {r(XA+4*t,4)}, v38 offset:{L_A+64*t}")
    g("s_waitcnt lgkmcnt(0)")
    wslice_mma_store(g, XA, 4096)
    g.ts(6)
    R2=RW+16
    l=spin_begin(g,"s")
    for n in range(4): g(f"buffer_load_dwordx4 {r(R2+4*n,4)}, v39, s[12:15], s38 offen offset:{1024*n} sc1")
    g("s_waitcnt vmcnt(0)")
    tagchk(g,[R2+1+2*k for k in range(8)],BT); spin_end(g,l,o.get('sl_s',1))
    g(f"""v_add_f32 v{R2}, v{R2}, v{R2+4}
    v_add_f32 v{R2+2}, v{R2+2}, v{R2+6}
    v_add_f32 v{R2+8}, v{R2+8}, v{R2+12}
    v_add_f32 v{R2+10}, v{R2+10}, v{R2+14}
    v_add_f32 v30, v{R2}, v{R2+8}
    v_add_f32 v31, v{R2+2}, v{R2+10}""")
    red8(g,30,BT); red8(g,31,BT)
    g(f"""v_cvt_pk_bf16_f32 v31, v30, v31
    v_lshlrev_b32 v30, 16, v31
    v_and_b32 v31, 0xffff0000, v31
    v_mul_f32 v30, v30, v32
    v_mul_f32 v31, v31, v33
    v_cvt_pk_bf16_f32 v31, v30, v31
    v_lshlrev_b32 v30, 16, v31
    v_and_b32 v31, 0xffff0000, v31
    v_add_f32 v30, v30, v34
    v_add_f32 v31, v31, v35
    v_cvt_pk_bf16_f32 v31, v30, v31
    s_mov_b64 exec, 0xff
    buffer_store_dword v31, v36, s[48:51], 0 offen
    s_cmp_lg_u32 s2, 0
    s_cbranch_scc1 L_hend
    s_mov_b64 exec, 1
    v_mov_b32 v30, s33
    buffer_store_dword v30, v39, s[12:15], 0 offen sc1
    L_hend:""")
    g.ts(7); g.tsdump()
    g("s_endpgm")

def build(opt):
    g=G(opt)
    hdr=open("cdna_kernels/"+NAME+".s.ref").read().split("; Override launch")[0]
    g.L.append(hdr+f"; @launch grid=(256,1,1) block=(320,1,1) lds={LDS}")
    g.L.append(f'.amdgcn_target "amdgcn-amd-amdhsa--gfx950"\n.text\n.globl {NAME}_kernel\n.p2align 8\n.type {NAME}_kernel,@function\n{NAME}_kernel:')
    g.ts(0)
    g(f"""s_cmp_ge_u32 s2, 256
    s_cbranch_scc1 L_exit
    s_load_dwordx16 s[16:31], s[0:1], 0
    s_load_dwordx8 s[64:71], s[0:1], 64
    v_lshrrev_b32 v2, 6, v0
    v_and_b32 v1, 63, v0
    s_nop 0
    v_readfirstlane_b32 s3, v2
    s_waitcnt lgkmcnt(0)
    s_load_dword s72, s[70:71], 0""")
    srd(g, 12, 70, W_END)
    g("s_cmp_eq_u32 s3, 0\ns_cbranch_scc1 L_helper")
    mark=len(g.L); stream(g)
    g("L_helper:"); mark2=len(g.L); helper(g)
    for m in (mark2, mark):
        k=next(i for i in range(m,len(g.L)) if g.L[i].strip()=="s_waitcnt lgkmcnt(0)")
        g.L.insert(k+1,"  s_add_u32 s33, s72, 0x9e3779b9")
    g("L_exit:\ns_endpgm")
    g.L.append(f""".section .rodata,"a"
.p2align 6
.amdhsa_kernel {NAME}_kernel
  .amdhsa_next_free_vgpr 216
  .amdhsa_next_free_sgpr 102
  .amdhsa_accum_offset 216
  .amdhsa_group_segment_fixed_size 0
  .amdhsa_kernarg_size 96
  .amdhsa_user_sgpr_count 2
  .amdhsa_user_sgpr_kernarg_segment_ptr 1
  .amdhsa_system_sgpr_workgroup_id_x 1
.end_amdhsa_kernel""")
    return "\n".join(g.L)+"\n"

if __name__=="__main__":
    opt=eval(sys.argv[2]) if len(sys.argv)>2 else {}
    open(sys.argv[1],"w").write(build(opt))
```

```python
import sys, struct
NAME = "recurrent_scan__gqa_block_cached__glu_gated_bilinear__decode"
def f2u(x): return struct.unpack('<I', struct.pack('<f', x))[0]
CSC = f2u(0.0625*1.4426950408889634)
W_Q, W_H, W_Y, W_S, W_P, W_ML, W_TS, W_END = 0x1000, 0x21000, 0x30000, 0xA0000, 0x180000, 0x280000, 0x290000, 0x300000
L_XN, XNS = 0, 912
L_Q = 7424
L_O = 8448
L_ML = 16640
L_A, AS = 16704, 272
L_CNT = 18944
L_W0, L_W1 = 35840, 19456
LDS = 35840+57344
W_F = 0x28000
DPPA = "row_mask:0xf bank_mask:0xf"
SPIN = 20000

class G:
    def __init__(s, opt): s.L=[]; s.o=opt; s.n=0
    def __call__(s, t):
        for ln in t.split("\n"):
            ln=ln.strip()
            if ln: s.L.append(ln if ln.endswith(":") else "  "+ln)
    def lab(s, p): s.n+=1; return f"L_{p}_{s.n}"
    def ts(s, k):
        if s.o.get('ts'): s(f"s_memrealtime s[{80+2*k}:{81+2*k}]")
    def tsdump(s):
        if not s.o.get('ts'): return
        s("s_waitcnt lgkmcnt(0)\ns_mov_b64 exec, 1")
        for k in range(8): s(f"v_mov_b32 v{8+k}, s{80+2*k}")
        s(f"s_mul_i32 s40, s2, 5\ns_add_u32 s40, s40, s3\ns_lshl_b32 s40, s40, 5\ns_add_u32 s40, s40, {W_TS}\nv_mov_b32 v7, 0")
        s("buffer_store_dwordx4 v[8:11], v7, s[12:15], s40 offen\nbuffer_store_dwordx4 v[12:15], v7, s[12:15], s40 offen offset:16")

def r(b, n): return f"v[{b}:{b+n-1}]"

def red_g(g, op, v, t):
    g(f"""v_mov_b32 v{t}, v{v}
    s_nop 1
    v_permlane32_swap_b32 v{v}, v{t}
    s_nop 0
    {op} v{v}, v{v}, v{t}
    v_mov_b32 v{t}, v{v}
    s_nop 1
    v_permlane16_swap_b32 v{v}, v{t}
    s_nop 0
    {op} v{v}, v{v}, v{t}""")

def spin_begin(g, p):
    l=g.lab(p); g(f"s_mov_b32 s41, {SPIN}\n{l}:"); return l
def spin_end(g, l, sleep):
    d=g.lab("dn")
    g(f"""s_cbranch_vccz {d}
    s_sub_u32 s41, s41, 1
    s_cmp_eq_u32 s41, 0
    s_cbranch_scc1 {d}
    s_sleep {sleep}
    s_branch {l}
    {d}:""")
def tagchk(g, regs, t):
    g(f"v_xor_b32 v{t}, s33, v{regs[0]}")
    for x in regs[1:]: g(f"v_xor_b32 v{t+1}, s33, v{x}\nv_or_b32 v{t}, v{t}, v{t+1}")
    g(f"v_cmp_ne_u32 vcc, 0, v{t}\ns_nop 4")

def srd(g, d, p, size): g(f"s_mov_b32 s{d}, s{p}\ns_mov_b32 s{d+1}, s{p+1}\ns_mov_b32 s{d+2}, {size}\ns_mov_b32 s{d+3}, 0x20000")

VK, VV, VQ, KB, S0, ACC, VM, VL, T0, PA, PB = 2, 3, 8, 40, 168, 172, 180, 181, 182, 192, 208
VKA, VVA, VONE, VIDX = 190, 191, 6, 7
def setaddr(g, s): g(f"s_lshl_b32 s34, s{74+s}, 13\nv_add_u32 v{VKA}, s34, v{VK}\nv_add_u32 v{VVA}, s34, v{VV}")
def kbuf(s): return KB+64*s
def vbuf(s): return KB+64*s+32
def ldK(g, s):
    for j in range(8): g(f"buffer_load_dwordx4 {r(kbuf(s)+4*j,4)}, v{VKA}, s[4:7], 0 offen offset:{(256 if g.o.get('q4') else 64)*j} nt")
def ldV(g, s):
    for j in range(8): g(f"buffer_load_dwordx4 {r(vbuf(s)+4*j,4)}, v{VVA}, s[8:11], 0 offen offset:{256*j} nt")
def step(g, s, wk, wv, refill):
    n0=len(g.L); step_(g, s, wk, wv, refill)
    if g.o.get('nocomp'):
        g.L[n0:]=[x for x in g.L[n0:] if not (x.strip().startswith('v_') and not any(k in x for k in ('readfirstlane','s34')))]
    if g.o.get('static'):
        g.L[n0:]=[(f"  s_add_u32 s{74+s}, s{74+s}, {g.inc}" if 'readfirstlane' in x else x) for x in g.L[n0:] if 'ds_add_rtn' not in x]
def step_(g, s, wk, wv, refill):
    g(f"s_cmp_ge_u32 s{74+s}, 128\ns_cbranch_scc1 L_done")
    if refill:
        g(f"s_mov_b64 exec, 1\nds_add_rtn_u32 v{VIDX}, v4, v{VONE} offset:{L_CNT}\ns_mov_b64 exec, -1")
    g(f"s_waitcnt vmcnt({wk})")
    if g.o.get('q4'):
        for hf in range(2):
            for tt in range(4): g(f"v_mfma_f32_16x16x32_bf16 {r(PA+4*tt,4)}, {r(kbuf(s)+4*(2*tt+hf),4)}, {r(VQ+4*hf,4)}, {'0' if hf==0 else r(PA+4*tt,4)}")
    else:
        for j in range(8): g(f"v_mfma_f32_16x16x32_bf16 {r(S0,4)}, {r(kbuf(s)+4*j,4)}, {r(VQ+4*j,4)}, {'0' if j==0 else r(S0,4)}")
    if refill:
        g(f"s_waitcnt lgkmcnt(0)\nv_readfirstlane_b32 s{74+s}, v{VIDX}"); setaddr(g, s); ldK(g, s)
    g("s_nop 7")
    t=T0
    if g.o.get('q4'):
        for tt in range(4): g(f"v_cndmask_b32 v{PA+4*tt}, v{PA+4*tt}, v{PA+4*tt+1}, s[44:45]\nv_cndmask_b32 v{PA+4*tt+2}, v{PA+4*tt+2}, v{PA+4*tt+3}, s[44:45]")
        for tt in range(4): g(f"v_cndmask_b32 v{S0+tt}, v{PA+4*tt}, v{PA+4*tt+2}, s[46:47]")
        for c in (4,8):
            for tt in range(4): g(f"v_add_f32_dpp v{S0+tt}, v{S0+tt}, v{S0+tt} row_ror:{c} {DPPA}")
    g(f"""v_cvt_pk_bf16_f32 v{t}, v{S0}, v{S0+1}
    v_cvt_pk_bf16_f32 v{t+1}, v{S0+2}, v{S0+3}
    v_lshlrev_b32 v{S0}, 16, v{t}
    v_and_b32 v{S0+1}, 0xffff0000, v{t}
    v_lshlrev_b32 v{S0+2}, 16, v{t+1}
    v_and_b32 v{S0+3}, 0xffff0000, v{t+1}
    v_max3_f32 v{t}, v{S0}, v{S0+1}, v{S0+2}
    v_max3_f32 v{t}, v{t}, v{S0+3}, v{VM}""")
    red_g(g, "v_max_f32", t, t+1)
    g(f"""v_sub_f32 v{t+1}, v{VM}, v{t}
    v_mul_f32 v{t+2}, s35, v{t}
    v_mul_f32 v{t+1}, s35, v{t+1}
    v_mov_b32 v{VM}, v{t}
    v_exp_f32 v{t+1}, v{t+1}""")
    for k in range(4): g(f"v_fma_f32 v{S0+k}, v{S0+k}, s35, -v{t+2}")
    for k in range(4): g(f"v_exp_f32 v{S0+k}, v{S0+k}")
    for k in range(8): g(f"v_mul_f32_dpp v{ACC+k}, v{t+1}, v{ACC+k} quad_perm:[{','.join([str(k&2)]*4)}] {DPPA}")
    g(f"""v_cvt_pk_bf16_f32 v{t+2}, v{S0}, v{S0+1}
    v_cvt_pk_bf16_f32 v{t+3}, v{S0+2}, v{S0+3}
    v_fma_f32 v{VL}, v{VL}, v{t+1}, v{S0}
    v_add_f32 v{S0+1}, v{S0+1}, v{S0+2}
    v_add_f32 v{VL}, v{VL}, v{S0+3}
    v_add_f32 v{VL}, v{VL}, v{S0+1}""")
    for e in range(8): g(f"v_cndmask_b32 v{PA+2*e}, 0, v{t+2}, s[{48+2*e}:{49+2*e}]\nv_cndmask_b32 v{PA+2*e+1}, 0, v{t+3}, s[{48+2*e}:{49+2*e}]")
    g(f"s_waitcnt vmcnt({wv})")
    V=vbuf(s)
    def vreg(j,a,d): return V+4*(2*j+a)+d
    def perm(n):
        a,e=n>>3,n&7; b=PB+2*(n&3); sel=36+(e&1)
        g(f"v_perm_b32 v{b}, v{vreg(1,a,e>>1)}, v{vreg(0,a,e>>1)}, s{sel}\nv_perm_b32 v{b+1}, v{vreg(3,a,e>>1)}, v{vreg(2,a,e>>1)}, s{sel}")
    perm(0); perm(1)
    for n in range(16):
        if n+2<16: perm(n+2)
        a,e=n>>3,n&7
        g(f"v_mfma_f32_16x16x16_bf16 {r(ACC+4*a,4)}, {r(PA+2*e,2)}, {r(PB+2*(n&3),2)}, {r(ACC+4*a,4)}")
    if refill:
        ldV(g, s)

def stream(g):
    o=g.o
    g(f"""s_sub_u32 s32, s3, 1
    s_lshl_b32 s4, s2, 20
    s_add_u32 s8, s20, s4
    s_addc_u32 s9, s21, 0
    s_add_u32 s4, s18, s4
    s_addc_u32 s5, s19, 0
    s_mov_b32 s6, 0x100000
    s_mov_b32 s7, 0x20000
    s_mov_b32 s10, 0x100000
    s_mov_b32 s11, 0x20000""")
    srd(g, 44, 16, 7168)
    X=PA
    g(f"""s_mul_i32 s38, s32, 1792
    v_lshl_add_u32 v{T0}, v1, 4, s38""")
    for k in range(8): g(f"v_mov_b32 v{X+k}, 0")
    g(f"""s_mov_b32 exec_hi, 0xffffff
    buffer_load_dwordx4 {r(X,4)}, v{T0}, s[44:47], 0 offen
    buffer_load_dwordx4 {r(X+4,4)}, v{T0}, s[44:47], 0 offen offset:896
    s_mov_b32 exec_hi, -1""")
    wq_setup(g, 76)
    g(f"""s_lshl_b32 s38, s32, 11
    s_add_u32 m0, s38, {L_W0+6*1024}
    s_lshl_b32 s38, s32, 19
    s_add_u32 s38, s38, {6*32*8192}
    buffer_load_dwordx4 v2, s[76:79], s38 offen {WF} lds
    s_add_u32 m0, m0, 1024
    s_add_u32 s38, s38, {32*8192}
    buffer_load_dwordx4 v2, s[76:79], s38 offen {WF} lds
    v_and_b32 v4, 15, v1
    v_lshrrev_b32 v5, 4, v1
    v_lshlrev_b32 v{VK}, 9, v4
    v_lshl_add_u32 v{VK}, v5, 4, v{VK}
    v_lshlrev_b32 v{VV}, 11, v5
    v_lshl_add_u32 v{VV}, v4, 4, v{VV}
    s_mov_b32 s74, s32
    s_add_u32 s75, s32, 4""")
    if o.get('q4'):
        g(f"v_lshrrev_b32 v6, 2, v4\nv_lshlrev_b32 v{VK}, 11, v6\nv_lshl_add_u32 v{VK}, v5, 6, v{VK}\nv_and_b32 v6, 3, v4\nv_lshl_add_u32 v{VK}, v6, 4, v{VK}")
    NPRE=o.get('npre',4)
    pre=[lambda:(setaddr(g,0),ldK(g,0)), lambda:ldV(g,0), lambda:(setaddr(g,1),ldK(g,1)), lambda:ldV(g,1)]
    for f in pre[:NPRE]: f()
    g.ts(1)
    g(f"s_mov_b32 s35, {CSC}\ns_mov_b32 s36, 0x05040100\ns_mov_b32 s37, 0x07060302")
    for e in range(8):
        m=0
        for i in range(16):
            if (i&1)+2*(i>>2)==e: m|=1<<i
        m|=m<<16
        g(f"s_mov_b32 s{48+2*e}, {m:#x}\ns_mov_b32 s{49+2*e}, {m:#x}")
    g(f"s_mul_i32 s38, s32, {2*XNS}\nv_lshl_add_u32 v{T0+1}, v1, 4, s38\nv_mov_b32 v{VONE}, 1")
    for k in range(8): g(f"v_mov_b32 v{ACC+k}, 0")
    g(f"v_mov_b32 v{VM}, 0xff800000\nv_mov_b32 v{VL}, 0")
    F=VQ; t=VQ+16
    def red64(v):
        for c in ("quad_perm:[1,0,3,2]","quad_perm:[2,3,0,1]","row_ror:4","row_ror:8"):
            g(f"s_nop 0\nv_add_f32_dpp v{v}, v{v}, v{v} {c} {DPPA}\nv_add_f32_dpp v{v+1}, v{v+1}, v{v+1} {c} {DPPA}")
        for sw in ("16","32"):
            g(f"""v_mov_b32 v{t+8}, v{v}
            v_mov_b32 v{t+9}, v{v+1}
            s_nop 0
            v_permlane{sw}_swap_b32 v{v}, v{t+8}
            v_permlane{sw}_swap_b32 v{v+1}, v{t+9}
            v_add_f32 v{v}, v{v}, v{t+8}
            v_add_f32 v{v+1}, v{v+1}, v{t+9}""")
        g(f"v_mul_f32 v{v}, {f2u(1/448):#x}, v{v}\nv_mul_f32 v{v+1}, {f2u(1/448):#x}, v{v+1}")
    def rbf2(v): g(f"v_cvt_pk_bf16_f32 v{v+1}, v{v}, v{v+1}\nv_lshlrev_b32 v{v}, 16, v{v+1}\nv_and_b32 v{v+1}, 0xffff0000, v{v+1}")
    g(f"s_waitcnt vmcnt({8*NPRE+2})")
    for n in range(8): g(f"v_lshlrev_b32 v{F+2*n}, 16, v{X+n}\nv_and_b32 v{F+2*n+1}, 0xffff0000, v{X+n}")
    g(f"v_add_f32 v{t}, v{F}, v{F+1}\nv_add_f32 v{t+1}, v{F+8}, v{F+9}")
    for k in range(2,8): g(f"v_add_f32 v{t}, v{t}, v{F+k}\nv_add_f32 v{t+1}, v{t+1}, v{F+8+k}")
    red64(t)
    g(f"v_mov_b32 v{t+2}, 0\nv_mov_b32 v{t+3}, 0\ns_mov_b32 exec_hi, 0xffffff")
    for k in range(16): g(f"v_sub_f32 v{t+4}, v{F+k}, v{t+(k>>3)}\nv_fmac_f32 v{t+2+(k>>3)}, v{t+4}, v{t+4}")
    g("s_mov_b32 exec_hi, -1\ns_nop 0")
    red64(t+2)
    rbf2(t); rbf2(t+2)
    g(f"v_add_f32 v{t+2}, {f2u(1e-5):#x}, v{t+2}\nv_add_f32 v{t+3}, {f2u(1e-5):#x}, v{t+3}"); rbf2(t+2)
    g(f"v_sqrt_f32 v{t+2}, v{t+2}\nv_sqrt_f32 v{t+3}, v{t+3}\ns_nop 0"); rbf2(t+2)
    g(f"v_rcp_f32 v{t+4}, v{t+2}\nv_rcp_f32 v{t+5}, v{t+3}")
    for k in range(16): g(f"v_sub_f32 v{F+k}, v{F+k}, v{t+(k>>3)}")
    for n in range(8): rbf2(F+2*n)
    for k in range(16): g(f"v_mul_f32 v{t+6}, v{F+k}, v{t+4+(k>>3)}\nv_fma_f32 v{F+k}, -v{t+6}, v{t+2+(k>>3)}, v{F+k}\nv_fma_f32 v{F+k}, v{F+k}, v{t+4+(k>>3)}, v{t+6}")
    for n in range(8): g(f"v_cvt_pk_bf16_f32 v{X+n}, v{F+2*n}, v{F+2*n+1}")
    g(f"""s_mov_b32 exec_hi, 0xffffff
    ds_write_b128 v{T0+1}, {r(X,4)} offset:{L_XN}
    ds_write_b128 v{T0+1}, {r(X+4,4)} offset:{L_XN+XNS}
    s_mov_b32 exec_hi, -1
    s_waitcnt vmcnt({8*NPRE})""")
    g("s_waitcnt lgkmcnt(0)\ns_barrier")
    for f in pre[NPRE:]: f()
    g(f"""v_bfe_u32 v{T0}, v1, 1, 1
    v_lshlrev_b32 v{T0}, 9, v{T0}
    v_lshl_add_u32 v{T0}, v5, {6 if o.get('q4') else 4}, v{T0}""")
    if o.get('q4'): g(f"v_lshrrev_b32 v7, 2, v4\nv_lshl_add_u32 v{T0}, v7, 4, v{T0}\ns_mov_b32 s44, 0xf0f0f0f0\ns_mov_b32 s45, s44\ns_mov_b32 s46, 0xff00ff00\ns_mov_b32 s47, s46")
    g("s_barrier")
    g.ts(2)
    if o.get('q4'):
        for j in range(2): g(f"ds_read_b128 {r(VQ+4*j,4)}, v{T0} offset:{L_Q+256*j}")
    else:
        for j in range(8): g(f"ds_read_b128 {r(VQ+4*j,4)}, v{T0} offset:{L_Q+64*j}")
    g("s_waitcnt lgkmcnt(0)")
    if o.get('mode','2')=='2':
        g("L_loop:"); g.inc=8
        step(g,0,24,24,True); step(g,1,24,24,True)
    else:
        g.inc=8; step(g,0,24,24,True); step(g,1,24,16,False)
        g("L_loop:"); g.inc=4
        step(g,0,8,8,True)
    g("s_branch L_loop\nL_done:")
    g.ts(3)
    if o.get('noside') or o.get('notail'): g("s_branch L_send")
    red_g(g, "v_add_f32", VL, T0)
    g(f"""s_lshl_b32 s38, s32, 11
    v_lshl_add_u32 v{T0}, v1, 4, s38
    v_and_b32 v{T0+1}, 2, v1
    v_lshlrev_b32 v{T0+1}, 2, v{T0+1}
    v_lshl_add_u32 v{T0+1}, s32, 4, v{T0+1}
    ds_write_b128 v{T0}, {r(ACC,4)} offset:{L_O}
    ds_write_b128 v{T0}, {r(ACC+4,4)} offset:{L_O+1024}
    ds_write_b64 v{T0+1}, {r(VM,2)} offset:{L_ML}
    s_lshr_b32 s38, s32, 1
    s_and_b32 s39, s32, 1
    s_lshl_b32 s40, s38, 10
    s_lshl_b32 s42, s39, 3
    s_add_u32 s40, s40, s42
    v_lshl_add_u32 v{T0}, v1, 4, s40
    v_mov_b32 v{T0+1}, s42
    s_lshr_b32 s40, s2, 2
    s_and_b32 s40, s40, 7
    s_lshl_b32 s40, s40, 1
    s_add_u32 s40, s40, s39          ; hq
    s_lshr_b32 s42, s2, 5
    s_lshl_b32 s42, s42, 2
    s_and_b32 s43, s2, 3
    s_add_u32 s42, s42, s43          ; b*4+p
    s_lshl_b32 s43, s40, 5
    s_add_u32 s43, s43, s42
    s_lshl_b32 s43, s43, 4
    s_add_u32 s43, s43, {W_ML}
    s_lshl_b32 s40, s40, 1
    s_add_u32 s40, s40, s38
    s_lshl_b32 s40, s40, 5
    s_add_u32 s40, s40, s42
    s_lshl_b32 s40, s40, 10
    s_add_u32 s40, s40, {W_P}        ; P slot
    v_lshlrev_b32 v4, 4, v1
    s_waitcnt lgkmcnt(0)
    s_barrier""")
    for w in range(4): g(f"ds_read_b64 {r(8+2*w,2)}, v{T0+1} offset:{L_ML+16*w}")
    for w in range(4): g(f"ds_read_b64 {r(16+2*w,2)}, v{T0} offset:{L_O+2048*w}")
    g("s_waitcnt lgkmcnt(4)\nv_max3_f32 v28, v8, v10, v12\nv_max_f32 v28, v28, v14\nv_mov_b32 v25, s33\nv_mov_b32 v27, s33\nv_mov_b32 v29, s33\nv_mov_b32 v31, s33")
    for w in range(4): g(f"v_sub_f32 v{8+2*w}, v{8+2*w}, v28\nv_mul_f32 v{8+2*w}, s35, v{8+2*w}\nv_exp_f32 v{8+2*w}, v{8+2*w}")
    g("s_waitcnt lgkmcnt(0)\nv_mul_f32 v24, v8, v16\nv_mul_f32 v26, v8, v17\nv_mul_f32 v30, v8, v9")
    for w in range(1,4): g(f"v_fmac_f32 v24, v{8+2*w}, v{16+2*w}\nv_fmac_f32 v26, v{8+2*w}, v{17+2*w}\nv_fmac_f32 v30, v{8+2*w}, v{9+2*w}")
    g(f"""buffer_store_dwordx4 v[24:27], v4, s[12:15], s40 offen sc1
    s_cmp_lg_u32 s38, 0
    s_cbranch_scc1 L_noml
    s_mov_b64 exec, 1
    buffer_store_dwordx4 v[28:31], v4, s[12:15], s43 offen sc1
    s_mov_b64 exec, -1
    L_noml:""")
    g.ts(4)
    g(f"""s_cmp_ge_u32 s2, 224
    s_cbranch_scc1 L_send
    s_mul_i32 s38, s2, 9363
    s_lshr_b32 s38, s38, 16          ; ks = w/7
    s_lshr_b32 s39, s38, 1
    s_lshl_b32 s39, s39, 9
    s_lshl_b32 s40, s32, 7
    s_add_u32 s39, s39, s40
    s_add_u32 s39, s39, {W_ML}
    s_lshl_b32 s38, s38, 15
    s_lshl_b32 s40, s32, 13
    s_add_u32 s38, s38, s40
    s_add_u32 s38, s38, {W_P}
    s_add_u32 s40, s38, 4096
    v_and_b32 v5, 7, v1
    v_lshlrev_b32 v5, 4, v5""")
    l=spin_begin(g,"ml")
    g("buffer_load_dwordx4 v[8:11], v5, s[12:15], s39 offen sc1\ns_waitcnt vmcnt(0)")
    tagchk(g,[9,11],6); spin_end(g,l,o.get('sl_ml',2))
    g.ts(5)
    l=spin_begin(g,"pd")
    for n in range(8): g(f"buffer_load_dwordx4 {r(40+4*n,4)}, v4, s[12:15], s{38 if n<4 else 40} offen offset:{1024*(n&3)} sc1")
    g(f"""v_max_f32_dpp v12, v8, v8 quad_perm:[1,0,3,2] {DPPA}
    s_nop 1
    v_max_f32_dpp v12, v12, v12 quad_perm:[2,3,0,1] {DPPA}
    v_sub_f32 v12, v8, v12
    v_mul_f32 v12, s35, v12
    v_exp_f32 v12, v12
    s_nop 0
    v_mul_f32 v13, v12, v10
    s_nop 1
    v_add_f32_dpp v13, v13, v13 quad_perm:[1,0,3,2] {DPPA}
    s_nop 1
    v_add_f32_dpp v13, v13, v13 quad_perm:[2,3,0,1] {DPPA}
    v_rcp_f32 v13, v13
    s_nop 0
    v_mul_f32 v12, v12, v13
    s_nop 0""")
    for n in range(8): g(f"v_readlane_b32 s{48+n}, v12, {n}")
    g("s_waitcnt vmcnt(0)")
    tagchk(g,[41+2*k for k in range(16)],6); spin_end(g,l,0)
    for b in range(2):
        g(f"v_mul_f32 v{16+2*b}, s{48+4*b}, v{40+16*b}\nv_mul_f32 v{17+2*b}, s{48+4*b}, v{42+16*b}")
        for p in range(1,4): g(f"v_fmac_f32 v{16+2*b}, s{48+4*b+p}, v{40+16*b+4*p}\nv_fmac_f32 v{17+2*b}, s{48+4*b+p}, v{42+16*b+4*p}")
    g(f"""s_mul_i32 s38, s32, {2*AS}
    v_lshl_add_u32 v5, v1, 2, s38
    v_cvt_pk_bf16_f32 v16, v16, v17
    v_cvt_pk_bf16_f32 v18, v18, v19
    ds_write_b32 v5, v16 offset:{L_A}
    ds_write_b32 v5, v18 offset:{L_A+AS}
    s_waitcnt lgkmcnt(0)
    s_barrier
    L_send:""")
    g.ts(6); g.tsdump()
    g("s_endpgm")

XA, RW, BT, D0, BW = 8, 72, 104, 112, 136
import os
WF = os.environ.get("WF","nt")
def wq_setup(g, sr):
    srd(g, sr, 22, 448*8192)
    g(f"""s_lshr_b32 s73, s2, 5
    s_lshl_b32 s73, s73, 5
    s_and_b32 s38, s2, 7
    s_lshl_b32 s38, s38, 2
    s_add_u32 s73, s73, s38
    s_bfe_u32 s38, s2, 0x20003
    s_add_u32 s73, s73, s38
    s_lshl_b32 s38, s73, 5
    v_and_b32 v3, 1, v1
    v_lshl_add_u32 v3, v3, 4, s38
    v_lshrrev_b32 v2, 1, v1
    v_lshl_add_u32 v2, v2, 13, v3""")
def dma(g, sr, ns, lbase, off, base=None, fl=""):
    for n in ns:
        g(f"s_mov_b32 m0, {lbase+1024*n}")
        g(f"s_mov_b32 s40, {off(n)}" if base is None else f"s_add_u32 s40, s{base}, {off(n)}")
        g(f"buffer_load_dwordx4 v2, s[{sr}:{sr+3}], s40 offen {fl} lds")
def proj_mma(g, D, lbase):
    for s in range(14):
        for u in range(2): g(f"ds_read_b64_tr_b16 {r(BW+4*s+2*u,2)}, v64 offset:{lbase+1024*s+128*u}")
        if s==6 or s==13:
            g("s_waitcnt lgkmcnt(0)")
            for q in range(s-6,s+1): g(f"v_mfma_f32_16x16x32_bf16 {r(D,4)}, {r(XA+4*q,4)}, {r(BW+4*q,4)}, {'0' if q==0 else r(D,4)}")
def pairpack(g, D, o):
    g(f"""v_cndmask_b32 v{BT}, v{D}, v{D+2}, s[54:55]
    v_cndmask_b32 v{BT+1}, v{D+1}, v{D+3}, s[54:55]
    s_nop 1
    v_mov_b32_dpp v{BT+2}, v{BT} quad_perm:[1,0,3,2] {DPPA}
    v_mov_b32_dpp v{BT+3}, v{BT+1} quad_perm:[1,0,3,2] {DPPA}
    v_cndmask_b32 v{o+1}, v{BT+2}, v{BT+1}, s[56:57]
    v_cndmask_b32 v{o}, v{BT}, v{BT+3}, s[56:57]""")
def wslice_regs(g, lbase):
    for t in range(4):
        for c in range(4):
            for u in range(2): g(f"ds_read_b64_tr_b16 {r(BW+16*t+4*c+2*u,2)}, v65 offset:{lbase+4096*t+512*u+32*c}")
        g("s_waitcnt lgkmcnt(0)")
def wslice_mma_store(g, A, jobb):
    for t in range(4):
        for e in range(4): g(f"v_mfma_f32_16x16x32_bf16 {r(D0+4*e,4)}, {r(A+4*t,4)}, {r(BW+16*t+4*e,4)}, {'0' if t==0 else r(D0+4*e,4)}")
    for q in range(4): g(f"v_mov_b32 v{RW+4*q+1}, s33\nv_mov_b32 v{RW+4*q+3}, s33")
    for q in range(4):
        g(f"""v_cndmask_b32 v{RW+4*q}, v{D0+q}, v{D0+8+q}, s[54:55]
        v_cndmask_b32 v{RW+4*q+2}, v{D0+4+q}, v{D0+12+q}, s[54:55]
        s_add_u32 s40, s43, {q*28*jobb}
        buffer_store_dwordx4 {r(RW+4*q,4)}, v6, s[12:15], s40 offen sc1""")
def joboff(g, jobb):
    g(f"""v_and_b32 v6, 1, v5
    v_mul_u32_u24 v6, 112, v6
    v_and_b32 v7, 2, v5
    v_add_u32 v6, v6, v7
    v_lshrrev_b32 v7, 3, v4
    v_add_u32 v6, v6, v7
    v_mul_u32_u24 v6, {jobb}, v6
    v_and_b32 v7, 7, v4
    v_lshl_add_u32 v6, v7, 4, v6""")
def red8x2(g, v, t):
    g(f"s_nop 0\nv_add_f32_dpp v{v}, v{v}, v{v} row_ror:8 {DPPA}\nv_add_f32_dpp v{v+1}, v{v+1}, v{v+1} row_ror:8 {DPPA}")
    for sw in ("16","32"):
        g(f"""v_mov_b32 v{t}, v{v}
        v_mov_b32 v{t+1}, v{v+1}
        s_nop 0
        v_permlane{sw}_swap_b32 v{v}, v{t}
        v_permlane{sw}_swap_b32 v{v+1}, v{t+1}
        v_add_f32 v{v}, v{v}, v{t}
        v_add_f32 v{v+1}, v{v+1}, v{t+1}""")
def rbf2(g, v): g(f"v_cvt_pk_bf16_f32 v{v+1}, v{v}, v{v+1}\nv_lshlrev_b32 v{v}, 16, v{v+1}\nv_and_b32 v{v+1}, 0xffff0000, v{v+1}")
def div7(g, src): g(f"s_mul_i32 s39, s{src}, 9363\ns_lshr_b32 s39, s39, 16\ns_mul_i32 s40, s39, 7\ns_sub_u32 s38, s{src}, s40\ns_mul_i32 s42, s39, {128*896}\ns_lshl_b32 s40, s38, 7\ns_add_u32 s42, s42, s40")

def helper(g):
    o=g.o
    g("s_setprio 3")
    wq_setup(g, 4)
    dma(g, 4, range(6), L_W0, lambda n: 32*n*8192, fl=WF)
    g.ts(1)
    g(f"""v_and_b32 v4, 15, v1
    v_lshrrev_b32 v5, 4, v1
    v_mov_b32 v6, 0
    v_mov_b32 v7, 8
    ds_write_b32 v6, v7 offset:{L_CNT}
    s_mov_b32 s54, 0
    s_mov_b32 s55, -1
    s_mov_b32 s56, 0xaaaaaaaa
    s_mov_b32 s57, 0xaaaaaaaa
    v_lshlrev_b32 v64, 8, v5
    v_lshl_add_u32 v64, v4, 3, v64
    v_lshrrev_b32 v7, 2, v4
    v_lshlrev_b32 v65, 10, v5
    v_lshl_add_u32 v65, v7, 7, v65
    v_and_b32 v7, 3, v4
    v_lshl_add_u32 v65, v7, 3, v65
    v_and_b32 v7, 7, v4
    v_mul_u32_u24 v66, {XNS}, v7
    v_lshl_add_u32 v66, v5, 4, v66
    v_and_b32 v6, 1, v5
    v_lshlrev_b32 v6, 2, v6
    v_and_b32 v7, 2, v5
    v_add_u32 v6, v6, v7
    v_and_b32 v7, 1, v4
    v_add_u32 v67, v6, v7
    v_lshrrev_b32 v7, 1, v4
    v_lshlrev_b32 v68, 3, v7
    v_lshl_add_u32 v69, v67, 6, v68
    v_lshlrev_b32 v70, 4, v1
    s_lshl_b32 s38, s73, 9
    s_add_u32 s38, s38, {W_Q}
    s_bfe_u32 s39, s2, 0x30002
    s_lshl_b32 s39, s39, 14
    s_lshr_b32 s40, s2, 5
    s_lshl_b32 s40, s40, 6
    s_add_u32 s39, s39, s40
    s_add_u32 s39, s39, {W_Q}
    s_add_u32 s42, s39, 8192
    v_lshrrev_b32 v71, 2, v1
    v_lshlrev_b32 v71, 9, v71
    v_and_b32 v7, 3, v1
    v_lshl_add_u32 v71, v7, 4, v71
    s_waitcnt vmcnt(0)
    s_waitcnt lgkmcnt(0)
    s_barrier""")
    g.ts(2)
    for s in range(14): g(f"ds_read_b128 {r(XA+4*s,4)}, v66 offset:{L_XN+64*s}")
    proj_mma(g, D0, L_W0)
    g(f"v_mov_b32 v{RW+1}, s33\ns_nop 6")
    pairpack(g, D0, D0+4)
    g(f"v_cvt_pk_bf16_f32 v{RW}, v{D0+4}, v{D0+5}\nbuffer_store_dwordx2 {r(RW,2)}, v69, s[12:15], s38 offen sc1")
    g.ts(3)
    l=spin_begin(g,"q")
    g(f"buffer_load_dwordx4 {r(RW+4,4)}, v71, s[12:15], s39 offen sc1\nbuffer_load_dwordx4 {r(RW+8,4)}, v71, s[12:15], s42 offen sc1\ns_waitcnt vmcnt(0)")
    tagchk(g,[RW+5,RW+7,RW+9,RW+11],BT); spin_end(g,l,0)
    g(f"""v_lshlrev_b32 v6, 3, v1
    v_add_u32 v6, {L_Q}, v6
    ds_write2_b32 v6, v{RW+4}, v{RW+6} offset0:0 offset1:1
    ds_write2_b32 v6, v{RW+8}, v{RW+10} offset0:128 offset1:129
    s_waitcnt lgkmcnt(0)
    s_barrier""")
    g.ts(4)
    if o.get('noside'): g("s_branch L_hend")
    g("s_cmp_ge_u32 s2, 224\ns_cbranch_scc1 L_nowo")
    div7(g, 2)
    g(f"""v_lshrrev_b32 v2, 4, v1
    v_bfe_u32 v7, v1, 3, 1
    v_lshl_add_u32 v2, v2, 3, v7
    v_mul_u32_u24 v2, 896, v2
    v_and_b32 v7, 7, v1
    v_lshl_add_u32 v2, v7, 4, v2""")
    srd(g, 8, 24, 4096*896); dma(g, 8, range(16), L_W1, lambda n: (32*(n&3)+2*(n>>2))*896, 42, "nt")
    g("L_nowo:")
    if o.get('noj23'): g("s_branch L_noj3")
    if o.get('claim'):
        srd(g, 60, 68, 256)
        l=g.lab("pr")
        g(f"""v_mov_b32 v6, 0
        {l}:
        s_sleep 16
        ds_read_b32 v7, v6 offset:{L_CNT}
        s_waitcnt lgkmcnt(0)
        v_readfirstlane_b32 s40, v7
        s_cmp_lt_u32 s40, {o['claim']}
        s_cbranch_scc1 {l}
        v_mov_b32 v7, 1
        s_mov_b64 exec, 1
        buffer_atomic_add v7, v6, s[60:63], 0 offen sc0 sc1
        s_mov_b64 exec, -1
        s_waitcnt vmcnt(0)
        v_readfirstlane_b32 s58, v7""")
    else:
        g("s_and_b32 s40, s2, 3\ns_bfe_u32 s58, s2, 0x20003\ns_cmp_lg_u32 s40, s58\ns_cbranch_scc1 L_noj3\ns_lshr_b32 s58, s2, 2\ns_waitcnt vmcnt(0)")
    g(f"""s_cmp_ge_u32 s58, 42
    s_cbranch_scc1 L_noj3
    s_lshl_b32 s59, s58, 7
    s_add_u32 s59, s59, {W_F}
    s_cmp_ge_u32 s58, 28
    s_cbranch_scc1 L_j3
    v_lshrrev_b32 v2, 3, v1
    v_mul_u32_u24 v2, 3584, v2
    v_and_b32 v7, 7, v1
    v_lshl_add_u32 v2, v7, 4, v2
    s_lshl_b32 s42, s58, 7""")
    def wpass(D, first):
        g("s_waitcnt vmcnt(0)")
        for t in range(14):
            B=BW+16*(t&1)
            for c in range(4):
                for u in range(2): g(f"ds_read_b64_tr_b16 {r(B+4*c+2*u,2)}, v71 offset:{4096*t+512*u+32*c}")
            g("s_waitcnt lgkmcnt(0)")
            for c in range(4): g(f"v_mfma_f32_16x16x32_bf16 {r(D+4*c,4)}, {r(XA+4*t,4)}, {r(B+4*c,4)}, {'0' if (t==0 and first) else r(D+4*c,4)}")
    def dmaloop(n_out, n_in, step_out, step_in):
        l=g.lab("dma")
        g(f"s_mov_b32 m0, {L_W0}\ns_mov_b32 s41, {n_out}\n{l}:")
        for n in range(n_in): g(f"s_add_u32 s40, s42, {n*step_in}\nbuffer_load_dwordx4 v2, s[4:7], s40 offen nt lds\ns_add_u32 m0, m0, 1024")
        g(f"s_add_u32 s42, s42, {step_out}\ns_sub_u32 s41, s41, 1\ns_cmp_lg_u32 s41, 0\ns_cbranch_scc1 {l}")
    D1=BW+32
    g(f"v_add_u32 v71, {L_W0}, v65")
    srd(g, 4, 28, 448*3584); dmaloop(7, 8, 64*3584, 8*3584); wpass(D0, True)
    g("s_lshl_b32 s42, s58, 7")
    srd(g, 4, 30, 448*3584); dmaloop(7, 8, 64*3584, 8*3584); wpass(D1, True)
    g("s_nop 7")
    for c in range(4):
        pairpack(g, D0+4*c, RW+4); pairpack(g, D1+4*c, RW+6); rbf2(g, RW+4); rbf2(g, RW+6)
        g(f"v_mul_f32 v{RW+4}, v{RW+4}, v{RW+6}\nv_mul_f32 v{RW+5}, v{RW+5}, v{RW+7}\nv_cvt_pk_bf16_f32 v{RW+c}, v{RW+4}, v{RW+5}")
    g(f"""v_mul_u32_u24 v69, 3584, v67
    v_lshl_add_u32 v69, v68, 1, v69
    s_lshl_b32 s38, s58, 7
    s_add_u32 s38, s38, {W_H}
    buffer_store_dwordx4 {r(RW,4)}, v69, s[12:15], s38 offen sc1
    s_branch L_flag
    L_j3:
    s_sub_u32 s38, s58, 28
    s_cmp_ge_u32 s38, 7
    s_cselect_b32 s39, 1, 0          ; K half
    s_mul_i32 s40, s39, 7
    s_sub_u32 s40, s38, s40          ; ns
    s_lshl_b32 s40, s40, 7
    s_mul_i32 s42, s39, {896*896}
    s_add_u32 s42, s42, s40
    v_lshrrev_b32 v2, 4, v1
    v_bfe_u32 v7, v1, 3, 1
    v_lshl_add_u32 v2, v2, 4, v7
    v_mul_u32_u24 v2, 896, v2
    v_and_b32 v7, 7, v1
    v_lshl_add_u32 v2, v7, 4, v2
    v_mul_u32_u24 v69, 3584, v7
    v_lshl_add_u32 v69, v5, 4, v69
    v_add_u32 v71, {L_W0}, v65
    s_mul_i32 s43, s39, 1792
    s_add_u32 s52, s43, {W_F}
    s_add_u32 s43, s43, {W_H}
    v_min_u32 v6, 13, v1
    v_lshlrev_b32 v6, 7, v6""")
    srd(g, 4, 64, 1792*896); dmaloop(7, 8, 64*896, 2*896)
    l=spin_begin(g,"hf")
    g(f"buffer_load_dword v{RW}, v6, s[12:15], s52 offen sc1\ns_waitcnt vmcnt(0)")
    tagchk(g,[RW],BT); spin_end(g,l,64)
    for t in range(14): g(f"buffer_load_dwordx4 {r(XA+4*t,4)}, v69, s[12:15], s43 offen offset:{64*t} sc1")
    wpass(D0, True)
    dmaloop(7, 8, 64*896, 2*896)
    g("s_waitcnt vmcnt(40)")
    for t in range(14): g(f"buffer_load_dwordx4 {r(XA+4*t,4)}, v69, s[12:15], s43 offen offset:{896+64*t} sc1")
    wpass(D0, False)
    g(f"""v_and_b32 v6, 1, v5
    v_lshlrev_b32 v6, 2, v6
    v_and_b32 v7, 2, v5
    v_add_u32 v6, v6, v7
    v_lshlrev_b32 v6, 8, v6
    v_lshl_add_u32 v6, v4, 4, v6
    s_lshl_b32 s38, s38, 11
    s_add_u32 s38, s38, {W_Y}""")
    for q in range(2):
        for c in range(4): g(f"v_cndmask_b32 v{RW+4*q+c}, v{D0+4*c+q}, v{D0+4*c+2+q}, s[54:55]")
        g(f"buffer_store_dwordx4 {r(RW+4*q,4)}, v6, s[12:15], s38 offen offset:{256*q} sc1")
    g(f"""L_flag:
    s_waitcnt vmcnt(0)
    v_mov_b32 v6, s33
    s_mov_b64 exec, 1
    buffer_store_dword v6, v70, s[12:15], s59 offen sc1
    s_mov_b64 exec, -1
    L_noj3:
    s_cmp_ge_u32 s2, 224
    s_cbranch_scc1 L_hend""")
    div7(g, 2)
    g("v_and_b32 v7, 7, v1")
    g(f"""s_lshl_b32 s43, s38, 14
    s_lshl_b32 s40, s39, 7
    s_add_u32 s43, s43, s40
    s_add_u32 s43, s43, {W_S}
    s_lshr_b32 s38, s2, 1
    s_lshl_b32 s38, s38, 6
    s_and_b32 s40, s2, 1
    s_lshl_b32 s40, s40, 4
    s_add_u32 s38, s38, s40
    v_lshl_add_u32 v36, v7, 1, s38""")
    srd(g, 44, 16, 7168); srd(g, 48, 66, 7168)
    g(f"buffer_load_ushort v34, v36, s[44:47], 0 offen\nbuffer_load_ushort v35, v36, s[44:47], 0 offen offset:32\ns_waitcnt vmcnt(0)")
    wslice_regs(g, L_W1); joboff(g, 4096)
    g(f"""v_lshlrev_b32 v34, 16, v34
    v_lshlrev_b32 v35, 16, v35
    v_mul_u32_u24 v38, {AS}, v7
    v_lshl_add_u32 v38, v5, 4, v38
    s_mul_i32 s38, s2, 2341
    s_lshr_b32 s38, s38, 16          ; b = w/28
    s_mul_i32 s39, s38, 28
    s_sub_u32 s39, s2, s39
    s_lshr_b32 s40, s39, 2           ; ns
    s_lshl_b32 s52, s40, 7
    s_add_u32 s52, s52, {W_F+28*128}
    s_lshl_b32 s40, s40, 11
    s_lshl_b32 s38, s38, 8
    s_add_u32 s38, s38, s40
    s_and_b32 s40, s39, 1
    s_lshl_b32 s40, s40, 7
    s_add_u32 s38, s38, s40
    s_and_b32 s40, s39, 2
    s_lshl_b32 s40, s40, 2
    s_add_u32 s38, s38, s40
    s_add_u32 s38, s38, {W_Y}
    v_bfe_u32 v39, v1, 3, 1
    v_mul_u32_u24 v37, 896, v39
    v_mul_u32_u24 v39, 14336, v39
    v_lshl_add_u32 v39, v7, 4, v39""")
    g.ts(5)
    if o.get('notail'): g("s_branch L_hend")
    g("s_barrier")
    l=spin_begin(g,"y")
    g(f"buffer_load_dword v{RW}, v37, s[12:15], s52 offen sc1\ns_waitcnt vmcnt(0)")
    tagchk(g,[RW],BT)
    if o.get('noj23'): g("s_mov_b64 vcc, 0")
    spin_end(g,l,8)
    g(f"""buffer_load_dwordx2 v[32:33], v39, s[12:15], s38 offen sc1
    s_waitcnt vmcnt(0)
    v_add_f32_dpp v32, v32, v32 row_ror:8 {DPPA}
    v_add_f32_dpp v33, v33, v33 row_ror:8 {DPPA}""")
    rbf2(g,32)
    for v in (32,33):
        g(f"""v_mul_f32 v{BT}, {f2u(-1.4426950408889634):#x}, v{v}
        v_exp_f32 v{BT}, v{BT}
        s_nop 0
        v_add_f32 v{BT}, 1.0, v{BT}
        v_rcp_f32 v{BT}, v{BT}
        s_nop 0
        v_mul_f32 v{v}, v{v}, v{BT}""")
    rbf2(g,32)
    g(f"s_lshl_b32 s38, s2, 12\ns_add_u32 s38, s38, {W_S}\ns_barrier")
    for t in range(4): g(f"ds_read_b128 {r(XA+4*t,4)}, v38 offset:{L_A+64*t}")
    g("s_waitcnt lgkmcnt(0)")
    wslice_mma_store(g, XA, 4096)
    g.ts(6)
    R2=RW+16
    l=spin_begin(g,"s")
    for n in range(4): g(f"buffer_load_dwordx4 {r(R2+4*n,4)}, v70, s[12:15], s38 offen offset:{1024*n} sc1")
    g("s_waitcnt vmcnt(0)")
    tagchk(g,[R2+1+2*k for k in range(8)],BT); spin_end(g,l,o.get('sl_s',1))
    g(f"""v_add_f32 v{R2}, v{R2}, v{R2+4}
    v_add_f32 v{R2+2}, v{R2+2}, v{R2+6}
    v_add_f32 v{R2+8}, v{R2+8}, v{R2+12}
    v_add_f32 v{R2+10}, v{R2+10}, v{R2+14}
    v_add_f32 v30, v{R2}, v{R2+8}
    v_add_f32 v31, v{R2+2}, v{R2+10}""")
    red8x2(g,30,BT); rbf2(g,30)
    g("v_mul_f32 v30, v30, v32\nv_mul_f32 v31, v31, v33"); rbf2(g,30)
    g(f"""v_add_f32 v30, v30, v34
    v_add_f32 v31, v31, v35
    v_cvt_pk_bf16_f32 v31, v30, v31
    s_mov_b64 exec, 0xff
    buffer_store_short v31, v36, s[48:51], 0 offen
    buffer_store_short_d16_hi v31, v36, s[48:51], 0 offen offset:32
    s_cmp_lg_u32 s2, 0
    s_cbranch_scc1 L_hend
    s_mov_b64 exec, 1
    v_mov_b32 v30, s33
    buffer_store_dword v30, v70, s[12:15], 0 offen sc1
    L_hend:""")
    g.ts(7); g.tsdump()
    g("s_endpgm")

def build(opt):
    assert not (opt.get('claim') and opt.get('static'))
    g=G(opt)
    hdr=open("cdna_kernels/"+NAME+".s.ref").read().split("; Override launch")[0]
    g.L.append(hdr+f"; @launch grid=(256,1,1) block=(320,1,1) lds={LDS}")
    g.L.append(f'.amdgcn_target "amdgcn-amd-amdhsa--gfx950"\n.text\n.globl {NAME}_kernel\n.p2align 8\n.type {NAME}_kernel,@function\n{NAME}_kernel:')
    g.ts(0)
    g(f"""s_cmp_ge_u32 s2, 256
    s_cbranch_scc1 L_exit
    s_load_dwordx16 s[16:31], s[0:1], 0
    s_load_dwordx8 s[64:71], s[0:1], 64
    v_lshrrev_b32 v2, 6, v0
    v_and_b32 v1, 63, v0
    s_nop 0
    v_readfirstlane_b32 s3, v2
    s_waitcnt lgkmcnt(0)
    s_load_dword s72, s[70:71], 0""")
    srd(g, 12, 70, W_END)
    g("s_cmp_eq_u32 s3, 0\ns_cbranch_scc1 L_helper")
    mark=len(g.L); stream(g)
    g("L_helper:"); mark2=len(g.L); helper(g)
    for m in (mark2, mark):
        k=next(i for i in range(m,len(g.L)) if g.L[i].strip()=="s_waitcnt lgkmcnt(0)")
        g.L.insert(k+1,"  s_add_u32 s33, s72, 0x9e3779b9")
    g("L_exit:\ns_endpgm")
    g.L.append(f""".section .rodata,"a"
.p2align 6
.amdhsa_kernel {NAME}_kernel
  .amdhsa_next_free_vgpr 216
  .amdhsa_next_free_sgpr 102
  .amdhsa_accum_offset 216
  .amdhsa_group_segment_fixed_size 0
  .amdhsa_kernarg_size 96
  .amdhsa_user_sgpr_count 2
  .amdhsa_user_sgpr_kernarg_segment_ptr 1
  .amdhsa_system_sgpr_workgroup_id_x 1
.end_amdhsa_kernel""")
    return "\n".join(g.L)+"\n"

if __name__=="__main__":
    opt=eval(sys.argv[2]) if len(sys.argv)>2 else {}
    open(sys.argv[1],"w").write(build(opt))
```

```python
import sys, struct
NAME = "recurrent_scan__gqa_block_cached__glu_gated_bilinear__decode"
def f2u(x): return struct.unpack('<I', struct.pack('<f', x))[0]
CSC = f2u(0.0625*1.4426950408889634)
W_Q, W_H, W_Y, W_S, W_P, W_ML, W_TS, W_END = 0x1000, 0x21000, 0x30000, 0xA0000, 0x180000, 0x280000, 0x290000, 0x300000
L_XN, XNS = 0, 912
L_Q = 7424
L_O = 8448
L_ML = 16640
L_A, AS = 16704, 272
L_CNT = 18944
L_W0, L_W1 = 35840, 19456
LDS = 35840+114688
W_F = 0x28000
DPPA = "row_mask:0xf bank_mask:0xf"
SPIN = 20000

class G:
    def __init__(s, opt): s.L=[]; s.o=opt; s.n=0
    def __call__(s, t):
        for ln in t.split("\n"):
            ln=ln.strip()
            if ln: s.L.append(ln if ln.endswith(":") else "  "+ln)
    def lab(s, p): s.n+=1; return f"L_{p}_{s.n}"
    def ts(s, k):
        if s.o.get('ts'): s(f"s_memrealtime s[{80+2*k}:{81+2*k}]")
    def tsdump(s):
        if not s.o.get('ts'): return
        s("s_waitcnt lgkmcnt(0)\ns_mov_b64 exec, 1")
        for k in range(8): s(f"v_mov_b32 v{8+k}, s{80+2*k}")
        s(f"s_mul_i32 s40, s2, 8\ns_add_u32 s40, s40, s3\ns_lshl_b32 s40, s40, 5\ns_add_u32 s40, s40, {W_TS}\nv_mov_b32 v7, 0")
        s("buffer_store_dwordx4 v[8:11], v7, s[12:15], s40 offen\nbuffer_store_dwordx4 v[12:15], v7, s[12:15], s40 offen offset:16")

def r(b, n): return f"v[{b}:{b+n-1}]"

def red_g(g, op, v, t):
    g(f"""v_mov_b32 v{t}, v{v}
    s_nop 1
    v_permlane32_swap_b32 v{v}, v{t}
    s_nop 0
    {op} v{v}, v{v}, v{t}
    v_mov_b32 v{t}, v{v}
    s_nop 1
    v_permlane16_swap_b32 v{v}, v{t}
    s_nop 0
    {op} v{v}, v{v}, v{t}""")

def spin_begin(g, p):
    l=g.lab(p); g(f"s_mov_b32 s41, {SPIN}\n{l}:"); return l
def spin_end(g, l, sleep):
    d=g.lab("dn")
    g(f"""s_cbranch_vccz {d}
    s_sub_u32 s41, s41, 1
    s_cmp_eq_u32 s41, 0
    s_cbranch_scc1 {d}
    s_sleep {sleep}
    s_branch {l}
    {d}:""")
def tagchk(g, regs, t):
    g(f"v_xor_b32 v{t}, s33, v{regs[0]}")
    for x in regs[1:]: g(f"v_xor_b32 v{t+1}, s33, v{x}\nv_or_b32 v{t}, v{t}, v{t+1}")
    g(f"v_cmp_ne_u32 vcc, 0, v{t}\ns_nop 4")

def srd(g, d, p, size): g(f"s_mov_b32 s{d}, s{p}\ns_mov_b32 s{d+1}, s{p+1}\ns_mov_b32 s{d+2}, {size}\ns_mov_b32 s{d+3}, 0x20000")

VK, VV, VQ, KB, S0, ACC, VM, VL, T0, PA, PB = 2, 3, 8, 40, 168, 172, 180, 181, 182, 192, 208
VKA, VVA, VONE, VIDX, VQ4, VK4 = 190, 191, 6, 7, 216, 189
VSC = 188
def buf(s): return KB+32*s
def ld(g, form, s, lds=False):
    g(f"v_add_u32 v{VKA}, s34, v{dict(r=VK,q=VK4,v=VV)[form]}\ns_add_u32 s34, s34, 0x8000")
    st=64 if form=='r' else 256; sr="s[8:11]" if form=='v' else "s[4:7]"
    for j in range(8):
        if lds: g(f"buffer_load_dwordx4 v{VKA}, {sr}, 0 offen offset:{st*j} nt lds\ns_add_u32 m0, m0, {1024-st if j<7 else 1024+7*st}\ns_nop 0")
        else: g(f"buffer_load_dwordx4 {r(buf(s)+4*j,4)}, v{VKA}, {sr}, 0 offen offset:{st*j} nt")
def tick(g): g(f"s_mov_b64 exec, 1\nds_add_u32 v4, v{VONE} offset:{L_CNT}\ns_mov_b64 exec, -1")
def unpack(g, t): g(f"v_lshlrev_b32 v{S0}, 16, v{t}\nv_and_b32 v{S0+1}, 0xffff0000, v{t}\nv_lshlrev_b32 v{S0+2}, 16, v{t+1}\nv_and_b32 v{S0+3}, 0xffff0000, v{t+1}")
def kstep(g, s, form, wait, nxt):
    tick(g)
    g(f"s_waitcnt vmcnt({wait})")
    if form=='q':
        for hf in range(2):
            for tt in range(4): g(f"v_mfma_f32_16x16x32_bf16 {r(PA+4*tt,4)}, {r(buf(s)+4*(2*tt+hf),4)}, {r(VQ4+4*hf,4)}, {'0' if hf==0 else r(PA+4*tt,4)}")
    else:
        for j in range(8): g(f"v_mfma_f32_16x16x32_bf16 {r(S0,4)}, {r(buf(s)+4*j,4)}, {r(VQ+4*j,4)}, {'0' if j==0 else r(S0,4)}")
    if nxt: ld(g, nxt, s)
    else: g("s_nop 7")
    if form=='q':
        for tt in range(4): g(f"v_cndmask_b32 v{PA+4*tt}, v{PA+4*tt}, v{PA+4*tt+1}, s[44:45]\nv_cndmask_b32 v{PA+4*tt+2}, v{PA+4*tt+2}, v{PA+4*tt+3}, s[44:45]")
        for tt in range(4): g(f"v_cndmask_b32 v{S0+tt}, v{PA+4*tt}, v{PA+4*tt+2}, s[46:47]")
        for c in (4,8):
            for tt in range(4): g(f"v_add_f32_dpp v{S0+tt}, v{S0+tt}, v{S0+tt} row_ror:{c} {DPPA}")
    t=T0
    g(f"v_cvt_pk_bf16_f32 v{t}, v{S0}, v{S0+1}\nv_cvt_pk_bf16_f32 v{t+1}, v{S0+2}, v{S0+3}\nds_write_b64 v{VSC}, {r(t,2)} offset:{L_O}")
    unpack(g, t)
    g(f"v_add_u32 v{VSC}, 64, v{VSC}\nv_max3_f32 v{VM}, v{S0}, v{S0+1}, v{VM}\nv_max3_f32 v{VM}, v{S0+2}, v{S0+3}, v{VM}")
def vstep(g, s, wait, nxt):
    t=T0
    tick(g)
    g(f"ds_read_b64 {r(t,2)}, v{VSC} offset:{L_O}\nv_add_u32 v{VSC}, 64, v{VSC}\ns_waitcnt lgkmcnt(0)")
    unpack(g, t)
    for k in range(4): g(f"v_fma_f32 v{S0+k}, v{S0+k}, s35, -v{t+4}")
    for k in range(4): g(f"v_exp_f32 v{S0+k}, v{S0+k}")
    g(f"""v_add_f32 v{VL}, v{VL}, v{S0}
    v_cvt_pk_bf16_f32 v{t+2}, v{S0}, v{S0+1}
    v_cvt_pk_bf16_f32 v{t+3}, v{S0+2}, v{S0+3}
    v_add_f32 v{S0+1}, v{S0+1}, v{S0+2}
    v_add_f32 v{VL}, v{VL}, v{S0+3}
    v_add_f32 v{VL}, v{VL}, v{S0+1}""")
    for e in range(8): g(f"v_cndmask_b32 v{PA+2*e}, 0, v{t+2}, s[{48+2*e}:{49+2*e}]\nv_cndmask_b32 v{PA+2*e+1}, 0, v{t+3}, s[{48+2*e}:{49+2*e}]")
    g(f"s_waitcnt vmcnt({wait})")
    V=buf(s); TB=buf(2)
    for n in range(16):
        a,e=n>>3,n&7; sel=36+(e&1); d=4*a+(e>>1)
        g(f"v_perm_b32 v{TB+2*n}, v{V+8+d}, v{V+d}, s{sel}\nv_perm_b32 v{TB+2*n+1}, v{V+24+d}, v{V+16+d}, s{sel}")
    if nxt: ld(g, 'v', s)
    for n in range(16):
        a,e=n&1,n>>1
        g(f"v_mfma_f32_16x16x16_bf16 {r(ACC+4*a,4)}, {r(PA+2*e,2)}, {r(TB+2*(8*a+e),2)}, {r(ACC+4*a,4)}")

def stream(g):
    o=g.o
    g(f"""s_sub_u32 s32, s3, 4
    s_lshl_b32 s4, s2, 20
    s_add_u32 s8, s20, s4
    s_addc_u32 s9, s21, 0
    s_add_u32 s4, s18, s4
    s_addc_u32 s5, s19, 0
    s_mov_b32 s6, 0x100000
    s_mov_b32 s7, 0x20000
    s_mov_b32 s10, 0x100000
    s_mov_b32 s11, 0x20000""")
    g(f"""v_and_b32 v4, 15, v1
    v_lshrrev_b32 v5, 4, v1
    v_lshlrev_b32 v{VK}, 9, v4
    v_lshl_add_u32 v{VK}, v5, 4, v{VK}
    v_lshlrev_b32 v{VV}, 11, v5
    v_lshl_add_u32 v{VV}, v4, 4, v{VV}
    s_lshl_b32 s34, s32, 13""")
    P0,P1=o.get('p0','rqrqrq'),o.get('p1','rq')
    g(f"v_lshrrev_b32 v6, 2, v4\nv_lshlrev_b32 v{VK4}, 11, v6\nv_lshl_add_u32 v{VK4}, v5, 6, v{VK4}\nv_and_b32 v6, 3, v4\nv_lshl_add_u32 v{VK4}, v6, 4, v{VK4}")
    g("s_barrier")
    for k in range(4): ld(g, P0[k], k)
    g(f"s_lshl_b32 s38, s32, 14\ns_add_u32 s38, s38, {L_W0+16384}\ns_mov_b32 m0, s38\nv_lshl_add_u32 v{T0+5}, v1, 4, s38")
    ld(g, P0[4], 0, True); ld(g, P0[5], 0, True)
    g.ts(1)
    g(f"s_mov_b32 s35, {CSC}\ns_mov_b32 s36, 0x05040100\ns_mov_b32 s37, 0x07060302")
    for e in range(8):
        m=0
        for i in range(16):
            if (i&1)+2*(i>>2)==e: m|=1<<i
        m|=m<<16
        g(f"s_mov_b32 s{48+2*e}, {m:#x}\ns_mov_b32 s{49+2*e}, {m:#x}")
    g(f"v_mov_b32 v{VONE}, 1")
    for k in range(8): g(f"v_mov_b32 v{ACC+k}, 0")
    g(f"v_mov_b32 v{VM}, 0xff800000\nv_mov_b32 v{VL}, 0")
    g(f"""v_bfe_u32 v{T0}, v1, 1, 1
    v_lshlrev_b32 v{T0}, 9, v{T0}
    v_lshl_add_u32 v{T0+2}, v5, 6, v{T0}
    v_lshl_add_u32 v{T0}, v5, 4, v{T0}
    v_lshrrev_b32 v7, 2, v4
    v_lshl_add_u32 v{T0+2}, v7, 4, v{T0+2}
    s_mov_b32 s44, 0xf0f0f0f0
    s_mov_b32 s45, s44
    s_mov_b32 s46, 0xff00ff00
    s_mov_b32 s47, s46
    s_barrier""")
    g.ts(2)
    for j in range(2): g(f"ds_read_b128 {r(VQ4+4*j,4)}, v{T0+2} offset:{L_Q+256*j}")
    for j in range(8): g(f"ds_read_b128 {r(VQ+4*j,4)}, v{T0} offset:{L_Q+64*j}")
    g("s_waitcnt lgkmcnt(0)")
    def scaddr(): g(f"s_lshl_b32 s38, s32, 11\nv_and_b32 v{VSC}, 2, v1\nv_lshl_add_u32 v{VSC}, v{VSC}, 2, s38\nv_lshl_add_u32 v{VSC}, v5, 4, v{VSC}")
    def loop(n, body):
        l=g.lab("run"); g(f"s_mov_b32 s38, {n}\n{l}:"); body(); g(f"s_sub_u32 s38, s38, 1\ns_cmp_lg_u32 s38, 0\ns_cbranch_scc1 {l}")
    scaddr()
    kstep(g,0,P0[0],40,P1[0]); kstep(g,1,P0[1],40,P1[1]); kstep(g,2,P0[2],40,None); kstep(g,3,P0[3],32,None)
    g("s_waitcnt vmcnt(16)")
    for j in range(16): g(f"ds_read_b128 {r(buf(2)+4*j,4)}, v{T0+5} offset:{1024*j}")
    g("s_waitcnt lgkmcnt(0)")
    kstep(g,2,P0[4],16,None); kstep(g,3,P0[5],16,None)
    loop(12, lambda: (kstep(g,0,P1[0],8,P1[0]), kstep(g,1,P1[1],8,P1[1])))
    g("s_lshl_b32 s34, s32, 13")
    kstep(g,0,P1[0],8,'v'); kstep(g,1,P1[1],8,'v')
    red_g(g, "v_max_f32", VM, T0)
    g(f"v_mul_f32 v{T0+4}, s35, v{VM}")
    scaddr()
    g.ts(7)
    loop(15, lambda: (vstep(g,0,8,True), vstep(g,1,8,True)))
    vstep(g,0,8,False); vstep(g,1,0,False)
    g.ts(3)
    if o.get('noside') or o.get('notail'): g("s_branch L_send")
    red_g(g, "v_add_f32", VL, T0)
    g(f"""s_lshl_b32 s38, s32, 11
    v_lshl_add_u32 v{T0}, v1, 4, s38
    v_and_b32 v{T0+1}, 2, v1
    v_lshlrev_b32 v{T0+1}, 2, v{T0+1}
    v_lshl_add_u32 v{T0+1}, s32, 4, v{T0+1}
    ds_write_b128 v{T0}, {r(ACC,4)} offset:{L_O}
    ds_write_b128 v{T0}, {r(ACC+4,4)} offset:{L_O+1024}
    ds_write_b64 v{T0+1}, {r(VM,2)} offset:{L_ML}
    s_lshr_b32 s38, s32, 1
    s_and_b32 s39, s32, 1
    s_lshl_b32 s40, s38, 10
    s_lshl_b32 s42, s39, 3
    s_add_u32 s40, s40, s42
    v_lshl_add_u32 v{T0}, v1, 4, s40
    v_mov_b32 v{T0+1}, s42
    s_lshr_b32 s40, s2, 2
    s_and_b32 s40, s40, 7
    s_lshl_b32 s40, s40, 1
    s_add_u32 s40, s40, s39          ; hq
    s_lshr_b32 s42, s2, 5
    s_lshl_b32 s42, s42, 2
    s_and_b32 s43, s2, 3
    s_add_u32 s42, s42, s43          ; b*4+p
    s_lshl_b32 s43, s40, 5
    s_add_u32 s43, s43, s42
    s_lshl_b32 s43, s43, 4
    s_add_u32 s43, s43, {W_ML}
    s_lshl_b32 s40, s40, 1
    s_add_u32 s40, s40, s38
    s_lshl_b32 s40, s40, 5
    s_add_u32 s40, s40, s42
    s_lshl_b32 s40, s40, 10
    s_add_u32 s40, s40, {W_P}        ; P slot
    v_lshlrev_b32 v4, 4, v1
    s_waitcnt lgkmcnt(0)
    s_barrier""")
    for w in range(4): g(f"ds_read_b64 {r(8+2*w,2)}, v{T0+1} offset:{L_ML+16*w}")
    for w in range(4): g(f"ds_read_b64 {r(16+2*w,2)}, v{T0} offset:{L_O+2048*w}")
    g("s_waitcnt lgkmcnt(4)\nv_max3_f32 v28, v8, v10, v12\nv_max_f32 v28, v28, v14\nv_mov_b32 v25, s33\nv_mov_b32 v27, s33\nv_mov_b32 v29, s33\nv_mov_b32 v31, s33")
    for w in range(4): g(f"v_sub_f32 v{8+2*w}, v{8+2*w}, v28\nv_mul_f32 v{8+2*w}, s35, v{8+2*w}\nv_exp_f32 v{8+2*w}, v{8+2*w}")
    g("s_waitcnt lgkmcnt(0)\nv_mul_f32 v24, v8, v16\nv_mul_f32 v26, v8, v17\nv_mul_f32 v30, v8, v9")
    for w in range(1,4): g(f"v_fmac_f32 v24, v{8+2*w}, v{16+2*w}\nv_fmac_f32 v26, v{8+2*w}, v{17+2*w}\nv_fmac_f32 v30, v{8+2*w}, v{9+2*w}")
    g(f"""buffer_store_dwordx4 v[24:27], v4, s[12:15], s40 offen sc1
    s_cmp_lg_u32 s38, 0
    s_cbranch_scc1 L_noml
    s_mov_b64 exec, 1
    buffer_store_dwordx4 v[28:31], v4, s[12:15], s43 offen sc1
    s_mov_b64 exec, -1
    L_noml:""")
    g.ts(4)
    g(f"""s_cmp_ge_u32 s2, 224
    s_cbranch_scc1 L_send
    s_mul_i32 s38, s2, 9363
    s_lshr_b32 s38, s38, 16          ; ks = w/7
    s_lshr_b32 s39, s38, 1
    s_lshl_b32 s39, s39, 9
    s_lshl_b32 s40, s32, 7
    s_add_u32 s39, s39, s40
    s_add_u32 s39, s39, {W_ML}
    s_lshl_b32 s38, s38, 15
    s_lshl_b32 s40, s32, 13
    s_add_u32 s38, s38, s40
    s_add_u32 s38, s38, {W_P}
    s_add_u32 s40, s38, 4096
    v_and_b32 v5, 7, v1
    v_lshlrev_b32 v5, 4, v5""")
    l=spin_begin(g,"ml")
    g("buffer_load_dwordx4 v[8:11], v5, s[12:15], s39 offen sc1\ns_waitcnt vmcnt(0)")
    tagchk(g,[9,11],6); spin_end(g,l,o.get('sl_ml',2))
    g.ts(5)
    l=spin_begin(g,"pd")
    for n in range(8): g(f"buffer_load_dwordx4 {r(40+4*n,4)}, v4, s[12:15], s{38 if n<4 else 40} offen offset:{1024*(n&3)} sc1")
    g(f"""v_max_f32_dpp v12, v8, v8 quad_perm:[1,0,3,2] {DPPA}
    s_nop 1
    v_max_f32_dpp v12, v12, v12 quad_perm:[2,3,0,1] {DPPA}
    v_sub_f32 v12, v8, v12
    v_mul_f32 v12, s35, v12
    v_exp_f32 v12, v12
    s_nop 0
    v_mul_f32 v13, v12, v10
    s_nop 1
    v_add_f32_dpp v13, v13, v13 quad_perm:[1,0,3,2] {DPPA}
    s_nop 1
    v_add_f32_dpp v13, v13, v13 quad_perm:[2,3,0,1] {DPPA}
    v_rcp_f32 v13, v13
    s_nop 0
    v_mul_f32 v12, v12, v13
    s_nop 0""")
    for n in range(8): g(f"v_readlane_b32 s{48+n}, v12, {n}")
    g("s_waitcnt vmcnt(0)")
    tagchk(g,[41+2*k for k in range(16)],6); spin_end(g,l,0)
    for b in range(2):
        g(f"v_mul_f32 v{16+2*b}, s{48+4*b}, v{40+16*b}\nv_mul_f32 v{17+2*b}, s{48+4*b}, v{42+16*b}")
        for p in range(1,4): g(f"v_fmac_f32 v{16+2*b}, s{48+4*b+p}, v{40+16*b+4*p}\nv_fmac_f32 v{17+2*b}, s{48+4*b+p}, v{42+16*b+4*p}")
    g(f"""s_mul_i32 s38, s32, {2*AS}
    v_lshl_add_u32 v5, v1, 2, s38
    v_cvt_pk_bf16_f32 v16, v16, v17
    v_cvt_pk_bf16_f32 v18, v18, v19
    ds_write_b32 v5, v16 offset:{L_A}
    ds_write_b32 v5, v18 offset:{L_A+AS}
    s_waitcnt lgkmcnt(0)
    s_barrier
    L_send:""")
    g.ts(6); g.tsdump()
    g("s_endpgm")

XA, RW, BT, D0, BW = 8, 72, 104, 112, 136
import os
WF = os.environ.get("WF","nt")
def wq_setup(g, sr):
    srd(g, sr, 22, 448*8192)
    g(f"""s_lshr_b32 s73, s2, 5
    s_lshl_b32 s73, s73, 5
    s_and_b32 s38, s2, 7
    s_lshl_b32 s38, s38, 2
    s_add_u32 s73, s73, s38
    s_bfe_u32 s38, s2, 0x20003
    s_add_u32 s73, s73, s38
    s_lshl_b32 s38, s73, 5
    v_and_b32 v3, 1, v1
    v_lshl_add_u32 v3, v3, 4, s38
    v_lshrrev_b32 v2, 1, v1
    v_lshl_add_u32 v2, v2, 13, v3""")
def dma(g, sr, ns, lbase, off, base=None, fl=""):
    for n in ns:
        g(f"s_mov_b32 m0, {lbase+1024*n}")
        g(f"s_mov_b32 s40, {off(n)}" if base is None else f"s_add_u32 s40, s{base}, {off(n)}")
        g(f"buffer_load_dwordx4 v2, s[{sr}:{sr+3}], s40 offen {fl} lds")
def proj_mma(g, D, lbase):
    for s in range(14):
        for u in range(2): g(f"ds_read_b64_tr_b16 {r(BW+4*s+2*u,2)}, v64 offset:{lbase+1024*s+128*u}")
        if s==6 or s==13:
            g("s_waitcnt lgkmcnt(0)")
            for q in range(s-6,s+1): g(f"v_mfma_f32_16x16x32_bf16 {r(D,4)}, {r(XA+4*q,4)}, {r(BW+4*q,4)}, {'0' if q==0 else r(D,4)}")
def pairpack(g, D, o):
    g(f"""v_cndmask_b32 v{BT}, v{D}, v{D+2}, s[54:55]
    v_cndmask_b32 v{BT+1}, v{D+1}, v{D+3}, s[54:55]
    s_nop 1
    v_mov_b32_dpp v{BT+2}, v{BT} quad_perm:[1,0,3,2] {DPPA}
    v_mov_b32_dpp v{BT+3}, v{BT+1} quad_perm:[1,0,3,2] {DPPA}
    v_cndmask_b32 v{o+1}, v{BT+2}, v{BT+1}, s[56:57]
    v_cndmask_b32 v{o}, v{BT}, v{BT+3}, s[56:57]""")
def wslice_regs(g, lbase):
    for t in range(4):
        for c in range(4):
            for u in range(2): g(f"ds_read_b64_tr_b16 {r(BW+16*t+4*c+2*u,2)}, v65 offset:{lbase+4096*t+512*u+32*c}")
        g("s_waitcnt lgkmcnt(0)")
def wslice_mma_store(g, A, jobb):
    for t in range(4):
        for e in range(4): g(f"v_mfma_f32_16x16x32_bf16 {r(D0+4*e,4)}, {r(A+4*t,4)}, {r(BW+16*t+4*e,4)}, {'0' if t==0 else r(D0+4*e,4)}")
    for q in range(4): g(f"v_mov_b32 v{RW+4*q+1}, s33\nv_mov_b32 v{RW+4*q+3}, s33")
    for q in range(4):
        g(f"""v_cndmask_b32 v{RW+4*q}, v{D0+q}, v{D0+8+q}, s[54:55]
        v_cndmask_b32 v{RW+4*q+2}, v{D0+4+q}, v{D0+12+q}, s[54:55]
        s_add_u32 s40, s43, {q*28*jobb}
        buffer_store_dwordx4 {r(RW+4*q,4)}, v6, s[12:15], s40 offen sc1""")
def joboff(g, jobb):
    g(f"""v_and_b32 v6, 1, v5
    v_mul_u32_u24 v6, 112, v6
    v_and_b32 v7, 2, v5
    v_add_u32 v6, v6, v7
    v_lshrrev_b32 v7, 3, v4
    v_add_u32 v6, v6, v7
    v_mul_u32_u24 v6, {jobb}, v6
    v_and_b32 v7, 7, v4
    v_lshl_add_u32 v6, v7, 4, v6""")
def red8x2(g, v, t):
    g(f"s_nop 0\nv_add_f32_dpp v{v}, v{v}, v{v} row_ror:8 {DPPA}\nv_add_f32_dpp v{v+1}, v{v+1}, v{v+1} row_ror:8 {DPPA}")
    for sw in ("16","32"):
        g(f"""v_mov_b32 v{t}, v{v}
        v_mov_b32 v{t+1}, v{v+1}
        s_nop 0
        v_permlane{sw}_swap_b32 v{v}, v{t}
        v_permlane{sw}_swap_b32 v{v+1}, v{t+1}
        v_add_f32 v{v}, v{v}, v{t}
        v_add_f32 v{v+1}, v{v+1}, v{t+1}""")
def rbf2(g, v): g(f"v_cvt_pk_bf16_f32 v{v+1}, v{v}, v{v+1}\nv_lshlrev_b32 v{v}, 16, v{v+1}\nv_and_b32 v{v+1}, 0xffff0000, v{v+1}")
def div7(g, src): g(f"s_mul_i32 s39, s{src}, 9363\ns_lshr_b32 s39, s39, 16\ns_mul_i32 s40, s39, 7\ns_sub_u32 s38, s{src}, s40\ns_mul_i32 s42, s39, {128*896}\ns_lshl_b32 s40, s38, 7\ns_add_u32 s42, s42, s40")

def helper(g):
    o=g.o
    g("s_setprio 3")
    srd(g, 44, 16, 7168)
    X=PA
    g(f"""s_mul_i32 s38, s3, 1792
    v_lshl_add_u32 v{T0}, v1, 4, s38""")
    for k in range(8): g(f"v_mov_b32 v{X+k}, 0")
    g(f"""s_mov_b32 exec_hi, 0xffffff
    buffer_load_dwordx4 {r(X,4)}, v{T0}, s[44:47], 0 offen
    buffer_load_dwordx4 {r(X+4,4)}, v{T0}, s[44:47], 0 offen offset:896
    s_mov_b32 exec_hi, -1""")
    wq_setup(g, 4)
    g(f"s_lshl_b32 s38, s3, 10\ns_add_u32 m0, s38, {L_W0}\ns_lshl_b32 s38, s3, 18")
    for n in range(4):
        if n==3: g("s_cmp_ge_u32 s3, 2\ns_cbranch_scc1 L_wq3")
        g(f"buffer_load_dwordx4 v2, s[4:7], s38 offen {WF} lds\ns_add_u32 m0, m0, 4096\ns_add_u32 s38, s38, {128*8192}")
    g(f"""L_wq3:
    s_barrier
    s_mul_i32 s38, s3, {2*XNS}
    v_lshl_add_u32 v{T0+1}, v1, 4, s38""")
    g.ts(1)
    g(f"""v_and_b32 v4, 15, v1
    v_lshrrev_b32 v5, 4, v1
    s_mov_b32 s54, 0
    s_mov_b32 s55, -1
    s_mov_b32 s56, 0xaaaaaaaa
    s_mov_b32 s57, 0xaaaaaaaa
    v_lshlrev_b32 v64, 8, v5
    v_lshl_add_u32 v64, v4, 3, v64
    v_lshrrev_b32 v7, 2, v4
    v_lshlrev_b32 v65, 10, v5
    v_lshl_add_u32 v65, v7, 7, v65
    v_and_b32 v7, 3, v4
    v_lshl_add_u32 v65, v7, 3, v65
    v_and_b32 v7, 7, v4
    v_mul_u32_u24 v66, {XNS}, v7
    v_lshl_add_u32 v66, v5, 4, v66
    v_and_b32 v6, 1, v5
    v_lshlrev_b32 v6, 2, v6
    v_and_b32 v7, 2, v5
    v_add_u32 v6, v6, v7
    v_and_b32 v7, 1, v4
    v_add_u32 v67, v6, v7
    v_lshrrev_b32 v7, 1, v4
    v_lshlrev_b32 v68, 3, v7
    v_lshl_add_u32 v69, v67, 6, v68
    v_lshlrev_b32 v70, 4, v1
    s_lshl_b32 s38, s73, 9
    s_add_u32 s38, s38, {W_Q}
    s_bfe_u32 s39, s2, 0x30002
    s_lshl_b32 s39, s39, 14
    s_lshr_b32 s40, s2, 5
    s_lshl_b32 s40, s40, 6
    s_add_u32 s39, s39, s40
    s_add_u32 s39, s39, {W_Q}
    s_add_u32 s42, s39, 8192
    v_lshrrev_b32 v71, 2, v1
    v_lshlrev_b32 v71, 9, v71
    v_and_b32 v7, 3, v1
    v_lshl_add_u32 v71, v7, 4, v71
""")
    F=VQ; t=VQ+16
    def red64(v):
        for c in ("quad_perm:[1,0,3,2]","quad_perm:[2,3,0,1]","row_ror:4","row_ror:8"):
            g(f"s_nop 0\nv_add_f32_dpp v{v}, v{v}, v{v} {c} {DPPA}\nv_add_f32_dpp v{v+1}, v{v+1}, v{v+1} {c} {DPPA}")
        for sw in ("16","32"):
            g(f"""v_mov_b32 v{t+8}, v{v}
            v_mov_b32 v{t+9}, v{v+1}
            s_nop 0
            v_permlane{sw}_swap_b32 v{v}, v{t+8}
            v_permlane{sw}_swap_b32 v{v+1}, v{t+9}
            v_add_f32 v{v}, v{v}, v{t+8}
            v_add_f32 v{v+1}, v{v+1}, v{t+9}""")
        g(f"v_mul_f32 v{v}, {f2u(1/448):#x}, v{v}\nv_mul_f32 v{v+1}, {f2u(1/448):#x}, v{v+1}")
    def rb2(v): g(f"v_cvt_pk_bf16_f32 v{v+1}, v{v}, v{v+1}\nv_lshlrev_b32 v{v}, 16, v{v+1}\nv_and_b32 v{v+1}, 0xffff0000, v{v+1}")
    g(f"s_waitcnt vmcnt(3)")
    for n in range(8): g(f"v_lshlrev_b32 v{F+2*n}, 16, v{X+n}\nv_and_b32 v{F+2*n+1}, 0xffff0000, v{X+n}")
    g(f"v_add_f32 v{t}, v{F}, v{F+1}\nv_add_f32 v{t+1}, v{F+8}, v{F+9}")
    for k in range(2,8): g(f"v_add_f32 v{t}, v{t}, v{F+k}\nv_add_f32 v{t+1}, v{t+1}, v{F+8+k}")
    red64(t)
    g(f"v_mov_b32 v{t+2}, 0\nv_mov_b32 v{t+3}, 0\ns_mov_b32 exec_hi, 0xffffff")
    for k in range(16): g(f"v_sub_f32 v{t+4}, v{F+k}, v{t+(k>>3)}\nv_fmac_f32 v{t+2+(k>>3)}, v{t+4}, v{t+4}")
    g("s_mov_b32 exec_hi, -1\ns_nop 0")
    red64(t+2)
    rb2(t); rb2(t+2)
    g(f"v_add_f32 v{t+2}, {f2u(1e-5):#x}, v{t+2}\nv_add_f32 v{t+3}, {f2u(1e-5):#x}, v{t+3}"); rb2(t+2)
    g(f"v_sqrt_f32 v{t+2}, v{t+2}\nv_sqrt_f32 v{t+3}, v{t+3}\ns_nop 0"); rb2(t+2)
    g(f"v_rcp_f32 v{t+4}, v{t+2}\nv_rcp_f32 v{t+5}, v{t+3}")
    for k in range(16): g(f"v_sub_f32 v{F+k}, v{F+k}, v{t+(k>>3)}")
    for n in range(8): rb2(F+2*n)
    for k in range(16): g(f"v_mul_f32 v{t+6}, v{F+k}, v{t+4+(k>>3)}\nv_fma_f32 v{F+k}, -v{t+6}, v{t+2+(k>>3)}, v{F+k}\nv_fma_f32 v{F+k}, v{F+k}, v{t+4+(k>>3)}, v{t+6}")
    for n in range(8): g(f"v_cvt_pk_bf16_f32 v{X+n}, v{F+2*n}, v{F+2*n+1}")
    g(f"""s_mov_b32 exec_hi, 0xffffff
    ds_write_b128 v{T0+1}, {r(X,4)} offset:{L_XN}
    ds_write_b128 v{T0+1}, {r(X+4,4)} offset:{L_XN+XNS}
    s_mov_b32 exec_hi, -1
    s_waitcnt vmcnt(0)""")
    def bump(off): g(f"s_waitcnt vmcnt(0) lgkmcnt(0)\nv_mov_b32 v6, 0\nv_mov_b32 v7, 1\ns_mov_b64 exec, 1\nds_add_u32 v6, v7 offset:{L_CNT+off}\ns_mov_b64 exec, -1")
    def ldswait(off, cmp, val, sleep):
        l=g.lab("lw")
        g(f"v_mov_b32 v6, 0\n{l}:" + (f"\ns_sleep {sleep}" if sleep else "") + f"\nds_read_b32 v7, v6 offset:{L_CNT+off}\ns_waitcnt lgkmcnt(0)\nv_readfirstlane_b32 s40, v7\ns_cmp_{cmp}_u32 s40, {val}\ns_cbranch_scc1 {l}")
    bump(4)
    g("s_cmp_lg_u32 s3, 0\ns_cbranch_scc1 L_b1")
    ldswait(4, "lt", 4, 0)
    g.ts(2)
    for s in range(14): g(f"ds_read_b128 {r(XA+4*s,4)}, v66 offset:{L_XN+64*s}")
    proj_mma(g, D0, L_W0)
    g(f"v_mov_b32 v{RW+1}, s33\ns_nop 6")
    pairpack(g, D0, D0+4)
    g(f"v_cvt_pk_bf16_f32 v{RW}, v{D0+4}, v{D0+5}\nbuffer_store_dwordx2 {r(RW,2)}, v69, s[12:15], s38 offen sc1")
    g.ts(3)
    if o.get('pp'):
        def qp(k): g(f"buffer_load_dwordx4 {r(BW+8*k,4)}, v71, s[12:15], s39 offen sc1\nbuffer_load_dwordx4 {r(BW+8*k+4,4)}, v71, s[12:15], s42 offen sc1\ns_sleep {o['pp']}")
        NP=4
        for k in range(NP-1): qp(k)
        g(f"s_mov_b32 s41, {SPIN}\nL_qp:")
        for k in range(NP):
            qp((k+NP-1)%NP)
            g(f"s_waitcnt vmcnt({2*NP-2})")
            for x in range(8): g(f"v_mov_b32 v{RW+4+x}, v{BW+8*k+x}")
            tagchk(g,[RW+5,RW+7,RW+9,RW+11],BT); g("s_cbranch_vccz L_qok")
        g("s_sub_u32 s41, s41, 1\ns_cmp_lg_u32 s41, 0\ns_cbranch_scc1 L_qp\nL_qok:")
    else:
        l=spin_begin(g,"q")
        g(f"buffer_load_dwordx4 {r(RW+4,4)}, v71, s[12:15], s39 offen sc1\nbuffer_load_dwordx4 {r(RW+8,4)}, v71, s[12:15], s42 offen sc1\ns_waitcnt vmcnt(0)")
        tagchk(g,[RW+5,RW+7,RW+9,RW+11],BT); spin_end(g,l,0)
    g(f"""v_lshlrev_b32 v6, 3, v1
    v_add_u32 v6, {L_Q}, v6
    ds_write2_b32 v6, v{RW+4}, v{RW+6} offset0:0 offset1:1
    ds_write2_b32 v6, v{RW+8}, v{RW+10} offset0:128 offset1:129
    s_waitcnt lgkmcnt(0)
    L_b1:
    s_barrier""")
    g.ts(4)
    if o.get('noside'): g("s_branch L_hend")
    g("s_cmp_ge_u32 s2, 224\ns_cbranch_scc1 L_nowo")
    div7(g, 2)
    g(f"""v_lshrrev_b32 v2, 4, v1
    v_bfe_u32 v7, v1, 3, 1
    v_lshl_add_u32 v2, v2, 3, v7
    v_mul_u32_u24 v2, 896, v2
    v_and_b32 v7, 7, v1
    v_lshl_add_u32 v2, v7, 4, v2""")
    srd(g, 8, 24, 4096*896)
    g(f"s_mul_i32 s40, s3, {2*896}\ns_add_u32 s42, s42, s40\ns_lshl_b32 s40, s3, 12\ns_add_u32 m0, s40, {L_W1}\ns_nop 0")
    for n in range(4): g(f"buffer_load_dwordx4 v2, s[8:11], s42 offen nt lds\ns_add_u32 m0, m0, 1024\ns_add_u32 s42, s42, {32*896}")
    g("L_nowo:")
    if o.get('noj23'): g("s_mov_b32 s58, 99")
    elif o.get('claim'):
        g("s_cmp_lg_u32 s3, 0\ns_cbranch_scc1 L_getjob")
        srd(g, 60, 68, 256)
        ldswait(0, "lt", o['claim'], 16)
        g(f"""v_mov_b32 v7, 1
        s_mov_b64 exec, 1
        buffer_atomic_add v7, v6, s[60:63], 0 offen sc0 sc1
        s_waitcnt vmcnt(0)
        v_add_u32 v7, 1, v7
        ds_write_b32 v6, v7 offset:{L_CNT+8}
        s_mov_b64 exec, -1
        L_getjob:""")
        ldswait(8, "eq", 0, 16)
        g("s_sub_u32 s58, s40, 1")
    else:
        g("s_and_b32 s40, s2, 3\ns_bfe_u32 s58, s2, 0x20003\ns_cmp_lg_u32 s40, s58\ns_cselect_b32 s40, 99, 0\ns_lshr_b32 s58, s2, 2\ns_add_u32 s58, s58, s40")
    g(f"""s_cmp_ge_u32 s58, 42
    s_cbranch_scc1 L_nojob
    s_lshl_b32 s59, s58, 7
    s_add_u32 s59, s59, {W_F}
    s_cmp_ge_u32 s58, 28
    s_cbranch_scc1 L_j3
    v_lshrrev_b32 v2, 3, v1
    v_mul_u32_u24 v2, 3584, v2
    v_and_b32 v7, 7, v1
    v_lshl_add_u32 v2, v7, 4, v2
    s_lshl_b32 s42, s58, 7""")
    def join():
        bump(12)
        g("s_cmp_lg_u32 s3, 0\ns_cbranch_scc1 L_exit")
        ldswait(12, "lt", 4, 4)
    def wpass(D, first):
        g("s_waitcnt vmcnt(0)")
        for t in range(14):
            B=BW+16*(t&1)
            for c in range(4):
                for u in range(2): g(f"ds_read_b64_tr_b16 {r(B+4*c+2*u,2)}, v71 offset:{4096*t+512*u+32*c}")
            g("s_waitcnt lgkmcnt(0)")
            for c in range(4): g(f"v_mfma_f32_16x16x32_bf16 {r(D+4*c,4)}, {r(XA+4*t,4)}, {r(B+4*c,4)}, {'0' if (t==0 and first) else r(D+4*c,4)}")
    def dmaloop(sr, lb, n_out, step_out, step_in):
        l=g.lab("dma")
        g(f"s_lshl_b32 s40, s3, 11\ns_add_u32 m0, s40, {lb}\ns_mul_i32 s40, s3, {2*step_in}\ns_add_u32 s40, s40, s42\ns_mov_b32 s41, {n_out}\n{l}:")
        g(f"""buffer_load_dwordx4 v2, s[{sr}:{sr+3}], s40 offen nt lds
        s_add_u32 m0, m0, 1024
        s_add_u32 s40, s40, {step_in}
        buffer_load_dwordx4 v2, s[{sr}:{sr+3}], s40 offen nt lds
        s_add_u32 m0, m0, 7168
        s_add_u32 s40, s40, {step_out-step_in}
        s_sub_u32 s41, s41, 1
        s_cmp_lg_u32 s41, 0
        s_cbranch_scc1 {l}""")
    D1=BW+32
    srd(g, 4, 28, 448*3584); srd(g, 44, 30, 448*3584)
    dmaloop(4, L_W0, 7, 64*3584, 8*3584); dmaloop(44, L_W0+57344, 7, 64*3584, 8*3584); join()
    g(f"v_add_u32 v71, {L_W0}, v65"); wpass(D0, True)
    g(f"v_add_u32 v71, {L_W0+57344}, v65"); wpass(D1, True)
    g("s_nop 7")
    for c in range(4):
        pairpack(g, D0+4*c, RW+4); pairpack(g, D1+4*c, RW+6); rbf2(g, RW+4); rbf2(g, RW+6)
        g(f"v_mul_f32 v{RW+4}, v{RW+4}, v{RW+6}\nv_mul_f32 v{RW+5}, v{RW+5}, v{RW+7}\nv_cvt_pk_bf16_f32 v{RW+c}, v{RW+4}, v{RW+5}")
    g(f"""v_mul_u32_u24 v69, 3584, v67
    v_lshl_add_u32 v69, v68, 1, v69
    s_lshl_b32 s38, s58, 7
    s_add_u32 s38, s38, {W_H}
    buffer_store_dwordx4 {r(RW,4)}, v69, s[12:15], s38 offen sc1
    s_branch L_flag
    L_j3:
    s_sub_u32 s38, s58, 28
    s_cmp_ge_u32 s38, 7
    s_cselect_b32 s39, 1, 0          ; K half
    s_mul_i32 s40, s39, 7
    s_sub_u32 s40, s38, s40          ; ns
    s_lshl_b32 s40, s40, 7
    s_mul_i32 s42, s39, {896*896}
    s_add_u32 s42, s42, s40
    v_lshrrev_b32 v2, 4, v1
    v_bfe_u32 v7, v1, 3, 1
    v_lshl_add_u32 v2, v2, 4, v7
    v_mul_u32_u24 v2, 896, v2
    v_and_b32 v7, 7, v1
    v_lshl_add_u32 v2, v7, 4, v2
    v_mul_u32_u24 v69, 3584, v7
    v_lshl_add_u32 v69, v5, 4, v69
    v_add_u32 v71, {L_W0}, v65
    s_mul_i32 s43, s39, 1792
    s_add_u32 s52, s43, {W_F}
    s_add_u32 s43, s43, {W_H}
""")
    srd(g, 4, 64, 1792*896); dmaloop(4, L_W0, 14, 64*896, 2*896); join()
    g("v_min_u32 v6, 13, v1\nv_lshlrev_b32 v6, 7, v6")
    l=spin_begin(g,"hf")
    g(f"buffer_load_dword v{RW}, v6, s[12:15], s52 offen sc1\ns_waitcnt vmcnt(0)")
    tagchk(g,[RW],BT); spin_end(g,l,64)
    for t in range(14): g(f"buffer_load_dwordx4 {r(XA+4*t,4)}, v69, s[12:15], s43 offen offset:{64*t} sc1")
    wpass(D0, True)
    g(f"v_add_u32 v71, {L_W0+57344}, v65\ns_nop 7")
    for t in range(14): g(f"buffer_load_dwordx4 {r(XA+4*t,4)}, v69, s[12:15], s43 offen offset:{896+64*t} sc1")
    wpass(D0, False)
    g(f"""v_and_b32 v6, 1, v5
    v_lshlrev_b32 v6, 2, v6
    v_and_b32 v7, 2, v5
    v_add_u32 v6, v6, v7
    v_lshlrev_b32 v6, 8, v6
    v_lshl_add_u32 v6, v4, 4, v6
    s_lshl_b32 s38, s38, 11
    s_add_u32 s38, s38, {W_Y}""")
    for q in range(2):
        for c in range(4): g(f"v_cndmask_b32 v{RW+4*q+c}, v{D0+4*c+q}, v{D0+4*c+2+q}, s[54:55]")
        g(f"buffer_store_dwordx4 {r(RW+4*q,4)}, v6, s[12:15], s38 offen offset:{256*q} sc1")
    g(f"""L_flag:
    s_waitcnt vmcnt(0)
    v_mov_b32 v6, s33
    s_mov_b64 exec, 1
    buffer_store_dword v6, v70, s[12:15], s59 offen sc1
    s_mov_b64 exec, -1
    s_branch L_noj3
    L_nojob:""")
    join()
    g(f"""L_noj3:
    s_cmp_ge_u32 s2, 224
    s_cbranch_scc1 L_hend""")
    div7(g, 2)
    g("v_and_b32 v7, 7, v1")
    g(f"""s_lshl_b32 s43, s38, 14
    s_lshl_b32 s40, s39, 7
    s_add_u32 s43, s43, s40
    s_add_u32 s43, s43, {W_S}
    s_lshr_b32 s38, s2, 1
    s_lshl_b32 s38, s38, 6
    s_and_b32 s40, s2, 1
    s_lshl_b32 s40, s40, 4
    s_add_u32 s38, s38, s40
    v_lshl_add_u32 v36, v7, 1, s38""")
    srd(g, 44, 16, 7168); srd(g, 48, 66, 7168)
    g(f"buffer_load_ushort v34, v36, s[44:47], 0 offen\nbuffer_load_ushort v35, v36, s[44:47], 0 offen offset:32\ns_waitcnt vmcnt(0)")
    wslice_regs(g, L_W1); joboff(g, 4096)
    g(f"""v_lshlrev_b32 v34, 16, v34
    v_lshlrev_b32 v35, 16, v35
    v_mul_u32_u24 v38, {AS}, v7
    v_lshl_add_u32 v38, v5, 4, v38
    s_mul_i32 s38, s2, 2341
    s_lshr_b32 s38, s38, 16          ; b = w/28
    s_mul_i32 s39, s38, 28
    s_sub_u32 s39, s2, s39
    s_lshr_b32 s40, s39, 2           ; ns
    s_lshl_b32 s52, s40, 7
    s_add_u32 s52, s52, {W_F+28*128}
    s_lshl_b32 s40, s40, 11
    s_lshl_b32 s38, s38, 8
    s_add_u32 s38, s38, s40
    s_and_b32 s40, s39, 1
    s_lshl_b32 s40, s40, 7
    s_add_u32 s38, s38, s40
    s_and_b32 s40, s39, 2
    s_lshl_b32 s40, s40, 2
    s_add_u32 s38, s38, s40
    s_add_u32 s38, s38, {W_Y}
    v_bfe_u32 v39, v1, 3, 1
    v_mul_u32_u24 v37, 896, v39
    v_mul_u32_u24 v39, 14336, v39
    v_lshl_add_u32 v39, v7, 4, v39""")
    g.ts(5)
    if o.get('notail'): g("s_branch L_hend")
    g("s_barrier")
    l=spin_begin(g,"y")
    g(f"buffer_load_dword v{RW}, v37, s[12:15], s52 offen sc1\ns_waitcnt vmcnt(0)")
    tagchk(g,[RW],BT)
    if o.get('noj23'): g("s_mov_b64 vcc, 0")
    spin_end(g,l,8)
    g(f"""buffer_load_dwordx2 v[32:33], v39, s[12:15], s38 offen sc1
    s_waitcnt vmcnt(0)
    v_add_f32_dpp v32, v32, v32 row_ror:8 {DPPA}
    v_add_f32_dpp v33, v33, v33 row_ror:8 {DPPA}""")
    rbf2(g,32)
    for v in (32,33):
        g(f"""v_mul_f32 v{BT}, {f2u(-1.4426950408889634):#x}, v{v}
        v_exp_f32 v{BT}, v{BT}
        s_nop 0
        v_add_f32 v{BT}, 1.0, v{BT}
        v_rcp_f32 v{BT}, v{BT}
        s_nop 0
        v_mul_f32 v{v}, v{v}, v{BT}""")
    rbf2(g,32)
    g(f"s_lshl_b32 s38, s2, 12\ns_add_u32 s38, s38, {W_S}\ns_barrier")
    for t in range(4): g(f"ds_read_b128 {r(XA+4*t,4)}, v38 offset:{L_A+64*t}")
    g("s_waitcnt lgkmcnt(0)")
    wslice_mma_store(g, XA, 4096)
    g.ts(6)
    R2=RW+16
    l=spin_begin(g,"s")
    for n in range(4): g(f"buffer_load_dwordx4 {r(R2+4*n,4)}, v70, s[12:15], s38 offen offset:{1024*n} sc1")
    g("s_waitcnt vmcnt(0)")
    tagchk(g,[R2+1+2*k for k in range(8)],BT); spin_end(g,l,o.get('sl_s',1))
    g(f"""v_add_f32 v{R2}, v{R2}, v{R2+4}
    v_add_f32 v{R2+2}, v{R2+2}, v{R2+6}
    v_add_f32 v{R2+8}, v{R2+8}, v{R2+12}
    v_add_f32 v{R2+10}, v{R2+10}, v{R2+14}
    v_add_f32 v30, v{R2}, v{R2+8}
    v_add_f32 v31, v{R2+2}, v{R2+10}""")
    red8x2(g,30,BT); rbf2(g,30)
    g("v_mul_f32 v30, v30, v32\nv_mul_f32 v31, v31, v33"); rbf2(g,30)
    g(f"""v_add_f32 v30, v30, v34
    v_add_f32 v31, v31, v35
    v_cvt_pk_bf16_f32 v31, v30, v31
    s_mov_b64 exec, 0xff
    buffer_store_short v31, v36, s[48:51], 0 offen
    buffer_store_short_d16_hi v31, v36, s[48:51], 0 offen offset:32
    s_cmp_lg_u32 s2, 0
    s_cbranch_scc1 L_hend
    s_mov_b64 exec, 1
    v_mov_b32 v30, s33
    buffer_store_dword v30, v70, s[12:15], 0 offen sc1
    L_hend:""")
    g.ts(7); g.tsdump()
    g("s_endpgm")

def build(opt):
    g=G(opt)
    hdr=open("cdna_kernels/"+NAME+".s.ref").read().split("; Override launch")[0]
    g.L.append(hdr+f"; @launch grid=(256,1,1) block=(512,1,1) lds={LDS}")
    g.L.append(f'.amdgcn_target "amdgcn-amd-amdhsa--gfx950"\n.text\n.globl {NAME}_kernel\n.p2align 8\n.type {NAME}_kernel,@function\n{NAME}_kernel:')
    g.ts(0)
    g(f"""s_cmp_ge_u32 s2, 256
    s_cbranch_scc1 L_exit
    s_load_dwordx16 s[16:31], s[0:1], 0
    s_load_dwordx8 s[64:71], s[0:1], 64
    v_lshrrev_b32 v2, 6, v0
    v_and_b32 v1, 63, v0
    v_mov_b32 v6, 0
    v_mov_b32 v8, 0
    v_mov_b32 v9, 0
    v_mov_b32 v10, 0
    v_mov_b32 v11, 0
    ds_write_b128 v6, v[8:11] offset:{L_CNT}
    v_readfirstlane_b32 s3, v2
    s_waitcnt lgkmcnt(0)
    s_load_dword s72, s[70:71], 0""")
    srd(g, 12, 70, W_END)
    g("s_cmp_lt_u32 s3, 4\ns_cbranch_scc1 L_helper")
    mark=len(g.L); stream(g)
    g("L_helper:"); mark2=len(g.L); helper(g)
    for m in (mark2, mark):
        k=next(i for i in range(m,len(g.L)) if g.L[i].strip()=="s_waitcnt lgkmcnt(0)")
        g.L.insert(k+1,"  s_add_u32 s33, s72, 0x9e3779b9")
    g("L_exit:\ns_endpgm")
    g.L.append(f""".section .rodata,"a"
.p2align 6
.amdhsa_kernel {NAME}_kernel
  .amdhsa_next_free_vgpr 224
  .amdhsa_next_free_sgpr 102
  .amdhsa_accum_offset 224
  .amdhsa_group_segment_fixed_size 0
  .amdhsa_kernarg_size 96
  .amdhsa_user_sgpr_count 2
  .amdhsa_user_sgpr_kernarg_segment_ptr 1
  .amdhsa_system_sgpr_workgroup_id_x 1
.end_amdhsa_kernel""")
    return "\n".join(g.L)+"\n"

if __name__=="__main__":
    opt=eval(sys.argv[2]) if len(sys.argv)>2 else {}
    open(sys.argv[1],"w").write(build(opt))
```

```python
import sys, struct
NAME = "recurrent_scan__gqa_block_cached__glu_gated_bilinear__decode"
def f2u(x): return struct.unpack('<I', struct.pack('<f', x))[0]
CSC = f2u(0.0625*1.4426950408889634)
W_Q, W_H, W_Y, W_S, W_P, W_ML, W_TS, W_END = 0x1000, 0x21000, 0x30000, 0xA0000, 0x180000, 0x280000, 0x290000, 0x300000
L_XN, XNS = 0, 912
L_Q = 7424
L_O = 8448
L_ML = 16640
L_A, AS = 16704, 272
L_CNT = 18944
L_W0, L_W1 = 35840, 19456
LDS = 35840+114688
W_F = 0x28000
DPPA = "row_mask:0xf bank_mask:0xf"
SPIN = 20000

class G:
    def __init__(s, opt): s.L=[]; s.o=opt; s.n=0
    def __call__(s, t):
        for ln in t.split("\n"):
            ln=ln.strip()
            if ln: s.L.append(ln if ln.endswith(":") else "  "+ln)
    def lab(s, p): s.n+=1; return f"L_{p}_{s.n}"
    def ts(s, k):
        if s.o.get('ts'): s(f"s_memrealtime s[{80+2*k}:{81+2*k}]")
    def tsdump(s):
        if not s.o.get('ts'): return
        s("s_waitcnt lgkmcnt(0)\ns_mov_b64 exec, 1")
        for k in range(8): s(f"v_mov_b32 v{8+k}, s{80+2*k}")
        s(f"s_mul_i32 s40, s2, 8\ns_add_u32 s40, s40, s3\ns_lshl_b32 s40, s40, 5\ns_add_u32 s40, s40, {W_TS}\nv_mov_b32 v7, 0")
        s("buffer_store_dwordx4 v[8:11], v7, s[12:15], s40 offen\nbuffer_store_dwordx4 v[12:15], v7, s[12:15], s40 offen offset:16")

def r(b, n): return f"v[{b}:{b+n-1}]"

def red_g(g, op, v, t):
    g(f"""v_mov_b32 v{t}, v{v}
    s_nop 1
    v_permlane32_swap_b32 v{v}, v{t}
    s_nop 0
    {op} v{v}, v{v}, v{t}
    v_mov_b32 v{t}, v{v}
    s_nop 1
    v_permlane16_swap_b32 v{v}, v{t}
    s_nop 0
    {op} v{v}, v{v}, v{t}""")

def spin_begin(g, p):
    l=g.lab(p); g(f"s_mov_b32 s41, {SPIN}\n{l}:"); return l
def spin_end(g, l, sleep):
    d=g.lab("dn")
    g(f"""s_cbranch_vccz {d}
    s_sub_u32 s41, s41, 1
    s_cmp_eq_u32 s41, 0
    s_cbranch_scc1 {d}
    s_sleep {sleep}
    s_branch {l}
    {d}:""")
def tagchk(g, regs, t):
    g(f"v_xor_b32 v{t}, s33, v{regs[0]}")
    for x in regs[1:]: g(f"v_xor_b32 v{t+1}, s33, v{x}\nv_or_b32 v{t}, v{t}, v{t+1}")
    g(f"v_cmp_ne_u32 vcc, 0, v{t}\ns_nop 4")

def srd(g, d, p, size): g(f"s_mov_b32 s{d}, s{p}\ns_mov_b32 s{d+1}, s{p+1}\ns_mov_b32 s{d+2}, {size}\ns_mov_b32 s{d+3}, 0x20000")

VK, VV, VQ, KB, S0, ACC, VM, VL, T0, PA, PB = 2, 3, 8, 40, 168, 172, 180, 181, 182, 192, 208
VKA, VVA, VONE, VIDX, VQ4, VK4 = 190, 191, 6, 7, 216, 189
def setaddr(g, s): g(f"s_lshl_b32 s34, s{74+s}, 13\nv_add_u32 v{VKA}, s34, v{VK4 if g.lf=='q' else VK}\nv_add_u32 v{VVA}, s34, v{VV}")
def kbuf(s): return KB+64*s
def vbuf(s): return KB+64*s+32
def ldK(g, s, js=range(8)):
    for j in js: g(f"buffer_load_dwordx4 {r(kbuf(s)+4*j,4)}, v{VKA}, s[4:7], 0 offen offset:{(256 if g.lf=='q' else 64)*j} nt")
def ldV(g, s, js=range(8)):
    for j in js: g(f"buffer_load_dwordx4 {r(vbuf(s)+4*j,4)}, v{VVA}, s[8:11], 0 offen offset:{256*j} nt")
def step(g, s, wk, wv, refill):
    n0=len(g.L); step_(g, s, wk, wv, refill)
    if g.o.get('nocomp'):
        g.L[n0:]=[x for x in g.L[n0:] if not (x.strip().startswith('v_') and not any(k in x for k in ('readfirstlane','s34')))]
    if g.o.get('static'):
        g.L[n0:]=[(f"  s_add_u32 s{74+s}, s{74+s}, {g.inc}" if 'readfirstlane' in x else x) for x in g.L[n0:]]
        g.L[n0:]=[x.replace(f'ds_add_rtn_u32 v{VIDX}, ','ds_add_u32 ') for x in g.L[n0:] if 'lgkmcnt' not in x]
def step_(g, s, wk, wv, refill):
    g(f"s_cmp_ge_u32 s{74+s}, 128\ns_cbranch_scc1 L_done")
    if refill:
        g(f"s_mov_b64 exec, 1\nds_add_rtn_u32 v{VIDX}, v4, v{VONE} offset:{L_CNT}\ns_mov_b64 exec, -1")
    W=g.o.get('win',16); A,Bq=range(4),range(4,8)
    win = W if wk is None else 0
    if win==8: g("s_waitcnt vmcnt(4)"); ldV(g,s,A); g("s_waitcnt vmcnt(4)"); ldV(g,s,Bq)
    elif win==12: g("s_waitcnt vmcnt(8)"); ldV(g,s,Bq); g("s_waitcnt vmcnt(8)")
    elif win==10: g("s_waitcnt vmcnt(7)"); ldV(g,s,range(2,5)); g("s_waitcnt vmcnt(7)"); ldV(g,s,range(5,8)); g("s_waitcnt vmcnt(8)")
    else: g(f"s_waitcnt vmcnt({8 if win else wk})")
    if g.cf=='q':
        for hf in range(2):
            for tt in range(4): g(f"v_mfma_f32_16x16x32_bf16 {r(PA+4*tt,4)}, {r(kbuf(s)+4*(2*tt+hf),4)}, {r(VQ4+4*hf,4)}, {'0' if hf==0 else r(PA+4*tt,4)}")
    else:
        for j in range(8): g(f"v_mfma_f32_16x16x32_bf16 {r(S0,4)}, {r(kbuf(s)+4*j,4)}, {r(VQ+4*j,4)}, {'0' if j==0 else r(S0,4)}")
    if refill:
        g(f"s_waitcnt lgkmcnt(0)\nv_readfirstlane_b32 s{74+s}, v{VIDX}"); setaddr(g, s); ldK(g, s, {8:[],10:range(2),12:A}.get(win,range(8)))
    g("s_nop 7")
    t=T0
    if g.cf=='q':
        for tt in range(4): g(f"v_cndmask_b32 v{PA+4*tt}, v{PA+4*tt}, v{PA+4*tt+1}, s[44:45]\nv_cndmask_b32 v{PA+4*tt+2}, v{PA+4*tt+2}, v{PA+4*tt+3}, s[44:45]")
        for tt in range(4): g(f"v_cndmask_b32 v{S0+tt}, v{PA+4*tt}, v{PA+4*tt+2}, s[46:47]")
        for c in (4,8):
            for tt in range(4): g(f"v_add_f32_dpp v{S0+tt}, v{S0+tt}, v{S0+tt} row_ror:{c} {DPPA}")
    g(f"""v_cvt_pk_bf16_f32 v{t}, v{S0}, v{S0+1}
    v_cvt_pk_bf16_f32 v{t+1}, v{S0+2}, v{S0+3}
    v_lshlrev_b32 v{S0}, 16, v{t}
    v_and_b32 v{S0+1}, 0xffff0000, v{t}
    v_lshlrev_b32 v{S0+2}, 16, v{t+1}
    v_and_b32 v{S0+3}, 0xffff0000, v{t+1}
    v_max3_f32 v{t}, v{S0}, v{S0+1}, v{S0+2}
    v_max3_f32 v{t}, v{t}, v{S0+3}, v{VM}""")
    red_g(g, "v_max_f32", t, t+1)
    g(f"""v_sub_f32 v{t+1}, v{VM}, v{t}
    v_mul_f32 v{t+2}, s35, v{t}
    v_mul_f32 v{t+1}, s35, v{t+1}
    v_mov_b32 v{VM}, v{t}
    v_exp_f32 v{t+1}, v{t+1}""")
    for k in range(4): g(f"v_fma_f32 v{S0+k}, v{S0+k}, s35, -v{t+2}")
    for k in range(4): g(f"v_exp_f32 v{S0+k}, v{S0+k}")
    for k in range(8): g(f"v_mul_f32_dpp v{ACC+k}, v{t+1}, v{ACC+k} quad_perm:[{','.join([str(k&2)]*4)}] {DPPA}")
    g(f"""v_cvt_pk_bf16_f32 v{t+2}, v{S0}, v{S0+1}
    v_cvt_pk_bf16_f32 v{t+3}, v{S0+2}, v{S0+3}
    v_fma_f32 v{VL}, v{VL}, v{t+1}, v{S0}
    v_add_f32 v{S0+1}, v{S0+1}, v{S0+2}
    v_add_f32 v{VL}, v{VL}, v{S0+3}
    v_add_f32 v{VL}, v{VL}, v{S0+1}""")
    for e in range(8): g(f"v_cndmask_b32 v{PA+2*e}, 0, v{t+2}, s[{48+2*e}:{49+2*e}]\nv_cndmask_b32 v{PA+2*e+1}, 0, v{t+3}, s[{48+2*e}:{49+2*e}]")
    if win==8: g("s_waitcnt vmcnt(4)"); ldK(g,s,A); g("s_waitcnt vmcnt(4)"); ldK(g,s,Bq)
    elif win==12: g("s_waitcnt vmcnt(8)"); ldK(g,s,Bq); g("s_waitcnt vmcnt(8)")
    elif win==10: g("s_waitcnt vmcnt(7)"); ldK(g,s,range(2,5)); g("s_waitcnt vmcnt(7)"); ldK(g,s,range(5,8)); g("s_waitcnt vmcnt(8)")
    else: g(f"s_waitcnt vmcnt({8 if win else wv})")
    V=vbuf(s)
    def vreg(j,a,d): return V+4*(2*j+a)+d
    def perm(n):
        a,e=n>>3,n&7; b=PB+2*(n&3); sel=36+(e&1)
        g(f"v_perm_b32 v{b}, v{vreg(1,a,e>>1)}, v{vreg(0,a,e>>1)}, s{sel}\nv_perm_b32 v{b+1}, v{vreg(3,a,e>>1)}, v{vreg(2,a,e>>1)}, s{sel}")
    perm(0); perm(1)
    for n in range(16):
        if n+2<16: perm(n+2)
        a,e=n>>3,n&7
        g(f"v_mfma_f32_16x16x16_bf16 {r(ACC+4*a,4)}, {r(PA+2*e,2)}, {r(PB+2*(n&3),2)}, {r(ACC+4*a,4)}")
    if refill:
        ldV(g, s, range(W-8))

def stream(g):
    o=g.o
    g(f"""s_sub_u32 s32, s3, 4
    s_lshl_b32 s4, s2, 20
    s_add_u32 s8, s20, s4
    s_addc_u32 s9, s21, 0
    s_add_u32 s4, s18, s4
    s_addc_u32 s5, s19, 0
    s_mov_b32 s6, 0x100000
    s_mov_b32 s7, 0x20000
    s_mov_b32 s10, 0x100000
    s_mov_b32 s11, 0x20000""")
    g(f"""v_and_b32 v4, 15, v1
    v_lshrrev_b32 v5, 4, v1
    v_lshlrev_b32 v{VK}, 9, v4
    v_lshl_add_u32 v{VK}, v5, 4, v{VK}
    v_lshlrev_b32 v{VV}, 11, v5
    v_lshl_add_u32 v{VV}, v4, 4, v{VV}
    s_mov_b32 s74, s32
    s_add_u32 s75, s32, 4""")
    PAT=o.get('pat','r'*32); assert len(PAT)==32; PAT+=PAT[-1]
    g(f"v_lshrrev_b32 v6, 2, v4\nv_lshlrev_b32 v{VK4}, 11, v6\nv_lshl_add_u32 v{VK4}, v5, 6, v{VK4}\nv_and_b32 v6, 3, v4\nv_lshl_add_u32 v{VK4}, v6, 4, v{VK4}")
    NPRE=o.get('npre',4)
    pre=[lambda:(setaddr(g,0),ldK(g,0)), lambda:ldV(g,0), lambda:(setaddr(g,1),ldK(g,1)), lambda:ldV(g,1)]
    g("s_barrier")
    for k,f in enumerate(pre): g.lf=PAT[k>>1]; f()
    g.lf=PAT[2]
    NL=o.get('nl',0)
    if NL:
        assert o.get('claim') or o.get('noj23')
        g(f"s_add_u32 s76, s32, 8\ns_lshl_b32 s38, s32, 14\ns_add_u32 s38, s38, {L_W0+16384}\ns_mov_b32 m0, s38\nv_lshl_add_u32 v{T0+1}, v1, 4, s38"); setaddr(g,2)
        ks=256 if g.lf=='q' else 64
        for j in range(8): g(f"buffer_load_dwordx4 v{VKA}, s[4:7], 0 offen offset:{ks*j} nt lds\ns_add_u32 m0, m0, {1024-ks if j<7 else 1024+7*ks}\ns_nop 0")
        for j in range(8): g(f"buffer_load_dwordx4 v{VVA}, s[8:11], 0 offen offset:{256*j} nt lds\ns_add_u32 m0, m0, 768\ns_nop 0")
    g.ts(1)
    g(f"s_mov_b32 s35, {CSC}\ns_mov_b32 s36, 0x05040100\ns_mov_b32 s37, 0x07060302")
    for e in range(8):
        m=0
        for i in range(16):
            if (i&1)+2*(i>>2)==e: m|=1<<i
        m|=m<<16
        g(f"s_mov_b32 s{48+2*e}, {m:#x}\ns_mov_b32 s{49+2*e}, {m:#x}")
    g(f"v_mov_b32 v{VONE}, 1")
    for k in range(8): g(f"v_mov_b32 v{ACC+k}, 0")
    g(f"v_mov_b32 v{VM}, 0xff800000\nv_mov_b32 v{VL}, 0")
    g(f"""v_bfe_u32 v{T0}, v1, 1, 1
    v_lshlrev_b32 v{T0}, 9, v{T0}
    v_lshl_add_u32 v{T0+2}, v5, 6, v{T0}
    v_lshl_add_u32 v{T0}, v5, 4, v{T0}
    v_lshrrev_b32 v7, 2, v4
    v_lshl_add_u32 v{T0+2}, v7, 4, v{T0+2}
    s_mov_b32 s44, 0xf0f0f0f0
    s_mov_b32 s45, s44
    s_mov_b32 s46, 0xff00ff00
    s_mov_b32 s47, s46
    s_barrier""")
    g.ts(2)
    for j in range(2): g(f"ds_read_b128 {r(VQ4+4*j,4)}, v{T0+2} offset:{L_Q+256*j}")
    for j in range(8): g(f"ds_read_b128 {r(VQ+4*j,4)}, v{T0} offset:{L_Q+64*j}")
    g("s_waitcnt lgkmcnt(0)")
    assert NL and o.get('static')
    W=o.get('win',16)
    g(f"v_mov_b32 v{T0+6}, v{T0+1}")
    g.inc=12; g.cf,g.lf=PAT[0],PAT[3]; step(g,0,40,40,True)
    g.cf=PAT[1]; step(g,1,24+W,16+W,False)
    g(f"s_waitcnt vmcnt({W})")
    for j in range(16): g(f"ds_read_b128 {r(kbuf(1)+4*j,4)}, v{T0+6} offset:{1024*j}")
    g("s_waitcnt lgkmcnt(0)")
    g.cf=PAT[2]; step(g,1,W,W,False)
    g.inc=4
    per=o.get('per')
    seq=[(PAT[n],PAT[n+1]) for n in range(3,32)]
    if per: seq=seq[:per]; g("L_per:")
    n=0
    while n<len(seq):
        m=n
        while m<len(seq) and seq[m]==seq[n]: m+=1
        g.cf,g.lf=seq[n]
        if m-n>1:
            l=g.lab("run"); g(f"s_mov_b32 s38, {m-n}\n{l}:")
        step(g,0,None,None,True)
        if m-n>1: g(f"s_sub_u32 s38, s38, 1\ns_cmp_lg_u32 s38, 0\ns_cbranch_scc1 {l}")
        n=m
    if per: g("s_branch L_per")
    g("L_done:")
    g.ts(3)
    if o.get('noside') or o.get('notail'): g("s_branch L_send")
    red_g(g, "v_add_f32", VL, T0)
    g(f"""s_lshl_b32 s38, s32, 11
    v_lshl_add_u32 v{T0}, v1, 4, s38
    v_and_b32 v{T0+1}, 2, v1
    v_lshlrev_b32 v{T0+1}, 2, v{T0+1}
    v_lshl_add_u32 v{T0+1}, s32, 4, v{T0+1}
    ds_write_b128 v{T0}, {r(ACC,4)} offset:{L_O}
    ds_write_b128 v{T0}, {r(ACC+4,4)} offset:{L_O+1024}
    ds_write_b64 v{T0+1}, {r(VM,2)} offset:{L_ML}
    s_lshr_b32 s38, s32, 1
    s_and_b32 s39, s32, 1
    s_lshl_b32 s40, s38, 10
    s_lshl_b32 s42, s39, 3
    s_add_u32 s40, s40, s42
    v_lshl_add_u32 v{T0}, v1, 4, s40
    v_mov_b32 v{T0+1}, s42
    s_lshr_b32 s40, s2, 2
    s_and_b32 s40, s40, 7
    s_lshl_b32 s40, s40, 1
    s_add_u32 s40, s40, s39          ; hq
    s_lshr_b32 s42, s2, 5
    s_lshl_b32 s42, s42, 2
    s_and_b32 s43, s2, 3
    s_add_u32 s42, s42, s43          ; b*4+p
    s_lshl_b32 s43, s40, 5
    s_add_u32 s43, s43, s42
    s_lshl_b32 s43, s43, 4
    s_add_u32 s43, s43, {W_ML}
    s_lshl_b32 s40, s40, 1
    s_add_u32 s40, s40, s38
    s_lshl_b32 s40, s40, 5
    s_add_u32 s40, s40, s42
    s_lshl_b32 s40, s40, 10
    s_add_u32 s40, s40, {W_P}        ; P slot
    v_lshlrev_b32 v4, 4, v1
    s_waitcnt lgkmcnt(0)
    s_barrier""")
    for w in range(4): g(f"ds_read_b64 {r(8+2*w,2)}, v{T0+1} offset:{L_ML+16*w}")
    for w in range(4): g(f"ds_read_b64 {r(16+2*w,2)}, v{T0} offset:{L_O+2048*w}")
    g("s_waitcnt lgkmcnt(4)\nv_max3_f32 v28, v8, v10, v12\nv_max_f32 v28, v28, v14\nv_mov_b32 v25, s33\nv_mov_b32 v27, s33\nv_mov_b32 v29, s33\nv_mov_b32 v31, s33")
    for w in range(4): g(f"v_sub_f32 v{8+2*w}, v{8+2*w}, v28\nv_mul_f32 v{8+2*w}, s35, v{8+2*w}\nv_exp_f32 v{8+2*w}, v{8+2*w}")
    g("s_waitcnt lgkmcnt(0)\nv_mul_f32 v24, v8, v16\nv_mul_f32 v26, v8, v17\nv_mul_f32 v30, v8, v9")
    for w in range(1,4): g(f"v_fmac_f32 v24, v{8+2*w}, v{16+2*w}\nv_fmac_f32 v26, v{8+2*w}, v{17+2*w}\nv_fmac_f32 v30, v{8+2*w}, v{9+2*w}")
    g(f"""buffer_store_dwordx4 v[24:27], v4, s[12:15], s40 offen sc1
    s_cmp_lg_u32 s38, 0
    s_cbranch_scc1 L_noml
    s_mov_b64 exec, 1
    buffer_store_dwordx4 v[28:31], v4, s[12:15], s43 offen sc1
    s_mov_b64 exec, -1
    L_noml:""")
    g.ts(4)
    g(f"""s_cmp_ge_u32 s2, 224
    s_cbranch_scc1 L_send
    s_mul_i32 s38, s2, 9363
    s_lshr_b32 s38, s38, 16          ; ks = w/7
    s_lshr_b32 s39, s38, 1
    s_lshl_b32 s39, s39, 9
    s_lshl_b32 s40, s32, 7
    s_add_u32 s39, s39, s40
    s_add_u32 s39, s39, {W_ML}
    s_lshl_b32 s38, s38, 15
    s_lshl_b32 s40, s32, 13
    s_add_u32 s38, s38, s40
    s_add_u32 s38, s38, {W_P}
    s_add_u32 s40, s38, 4096
    v_and_b32 v5, 7, v1
    v_lshlrev_b32 v5, 4, v5""")
    l=spin_begin(g,"ml")
    g("buffer_load_dwordx4 v[8:11], v5, s[12:15], s39 offen sc1\ns_waitcnt vmcnt(0)")
    tagchk(g,[9,11],6); spin_end(g,l,o.get('sl_ml',2))
    g.ts(5)
    l=spin_begin(g,"pd")
    for n in range(8): g(f"buffer_load_dwordx4 {r(40+4*n,4)}, v4, s[12:15], s{38 if n<4 else 40} offen offset:{1024*(n&3)} sc1")
    g(f"""v_max_f32_dpp v12, v8, v8 quad_perm:[1,0,3,2] {DPPA}
    s_nop 1
    v_max_f32_dpp v12, v12, v12 quad_perm:[2,3,0,1] {DPPA}
    v_sub_f32 v12, v8, v12
    v_mul_f32 v12, s35, v12
    v_exp_f32 v12, v12
    s_nop 0
    v_mul_f32 v13, v12, v10
    s_nop 1
    v_add_f32_dpp v13, v13, v13 quad_perm:[1,0,3,2] {DPPA}
    s_nop 1
    v_add_f32_dpp v13, v13, v13 quad_perm:[2,3,0,1] {DPPA}
    v_rcp_f32 v13, v13
    s_nop 0
    v_mul_f32 v12, v12, v13
    s_nop 0""")
    for n in range(8): g(f"v_readlane_b32 s{48+n}, v12, {n}")
    g("s_waitcnt vmcnt(0)")
    tagchk(g,[41+2*k for k in range(16)],6); spin_end(g,l,0)
    for b in range(2):
        g(f"v_mul_f32 v{16+2*b}, s{48+4*b}, v{40+16*b}\nv_mul_f32 v{17+2*b}, s{48+4*b}, v{42+16*b}")
        for p in range(1,4): g(f"v_fmac_f32 v{16+2*b}, s{48+4*b+p}, v{40+16*b+4*p}\nv_fmac_f32 v{17+2*b}, s{48+4*b+p}, v{42+16*b+4*p}")
    g(f"""s_mul_i32 s38, s32, {2*AS}
    v_lshl_add_u32 v5, v1, 2, s38
    v_cvt_pk_bf16_f32 v16, v16, v17
    v_cvt_pk_bf16_f32 v18, v18, v19
    ds_write_b32 v5, v16 offset:{L_A}
    ds_write_b32 v5, v18 offset:{L_A+AS}
    s_waitcnt lgkmcnt(0)
    s_barrier
    L_send:""")
    g.ts(6); g.tsdump()
    g("s_endpgm")

XA, RW, BT, D0, BW = 8, 72, 104, 112, 136
import os
WF = os.environ.get("WF","nt")
def wq_setup(g, sr):
    srd(g, sr, 22, 448*8192)
    g(f"""s_lshr_b32 s73, s2, 5
    s_lshl_b32 s73, s73, 5
    s_and_b32 s38, s2, 7
    s_lshl_b32 s38, s38, 2
    s_add_u32 s73, s73, s38
    s_bfe_u32 s38, s2, 0x20003
    s_add_u32 s73, s73, s38
    s_lshl_b32 s38, s73, 5
    v_and_b32 v3, 1, v1
    v_lshl_add_u32 v3, v3, 4, s38
    v_lshrrev_b32 v2, 1, v1
    v_lshl_add_u32 v2, v2, 13, v3""")
def dma(g, sr, ns, lbase, off, base=None, fl=""):
    for n in ns:
        g(f"s_mov_b32 m0, {lbase+1024*n}")
        g(f"s_mov_b32 s40, {off(n)}" if base is None else f"s_add_u32 s40, s{base}, {off(n)}")
        g(f"buffer_load_dwordx4 v2, s[{sr}:{sr+3}], s40 offen {fl} lds")
def proj_mma(g, D, lbase):
    for s in range(14):
        for u in range(2): g(f"ds_read_b64_tr_b16 {r(BW+4*s+2*u,2)}, v64 offset:{lbase+1024*s+128*u}")
        if s==6 or s==13:
            g("s_waitcnt lgkmcnt(0)")
            for q in range(s-6,s+1): g(f"v_mfma_f32_16x16x32_bf16 {r(D,4)}, {r(XA+4*q,4)}, {r(BW+4*q,4)}, {'0' if q==0 else r(D,4)}")
def pairpack(g, D, o):
    g(f"""v_cndmask_b32 v{BT}, v{D}, v{D+2}, s[54:55]
    v_cndmask_b32 v{BT+1}, v{D+1}, v{D+3}, s[54:55]
    s_nop 1
    v_mov_b32_dpp v{BT+2}, v{BT} quad_perm:[1,0,3,2] {DPPA}
    v_mov_b32_dpp v{BT+3}, v{BT+1} quad_perm:[1,0,3,2] {DPPA}
    v_cndmask_b32 v{o+1}, v{BT+2}, v{BT+1}, s[56:57]
    v_cndmask_b32 v{o}, v{BT}, v{BT+3}, s[56:57]""")
def wslice_regs(g, lbase):
    for t in range(4):
        for c in range(4):
            for u in range(2): g(f"ds_read_b64_tr_b16 {r(BW+16*t+4*c+2*u,2)}, v65 offset:{lbase+4096*t+512*u+32*c}")
        g("s_waitcnt lgkmcnt(0)")
def wslice_mma_store(g, A, jobb):
    for t in range(4):
        for e in range(4): g(f"v_mfma_f32_16x16x32_bf16 {r(D0+4*e,4)}, {r(A+4*t,4)}, {r(BW+16*t+4*e,4)}, {'0' if t==0 else r(D0+4*e,4)}")
    for q in range(4): g(f"v_mov_b32 v{RW+4*q+1}, s33\nv_mov_b32 v{RW+4*q+3}, s33")
    for q in range(4):
        g(f"""v_cndmask_b32 v{RW+4*q}, v{D0+q}, v{D0+8+q}, s[54:55]
        v_cndmask_b32 v{RW+4*q+2}, v{D0+4+q}, v{D0+12+q}, s[54:55]
        s_add_u32 s40, s43, {q*28*jobb}
        buffer_store_dwordx4 {r(RW+4*q,4)}, v6, s[12:15], s40 offen sc1""")
def joboff(g, jobb):
    g(f"""v_and_b32 v6, 1, v5
    v_mul_u32_u24 v6, 112, v6
    v_and_b32 v7, 2, v5
    v_add_u32 v6, v6, v7
    v_lshrrev_b32 v7, 3, v4
    v_add_u32 v6, v6, v7
    v_mul_u32_u24 v6, {jobb}, v6
    v_and_b32 v7, 7, v4
    v_lshl_add_u32 v6, v7, 4, v6""")
def red8x2(g, v, t):
    g(f"s_nop 0\nv_add_f32_dpp v{v}, v{v}, v{v} row_ror:8 {DPPA}\nv_add_f32_dpp v{v+1}, v{v+1}, v{v+1} row_ror:8 {DPPA}")
    for sw in ("16","32"):
        g(f"""v_mov_b32 v{t}, v{v}
        v_mov_b32 v{t+1}, v{v+1}
        s_nop 0
        v_permlane{sw}_swap_b32 v{v}, v{t}
        v_permlane{sw}_swap_b32 v{v+1}, v{t+1}
        v_add_f32 v{v}, v{v}, v{t}
        v_add_f32 v{v+1}, v{v+1}, v{t+1}""")
def rbf2(g, v): g(f"v_cvt_pk_bf16_f32 v{v+1}, v{v}, v{v+1}\nv_lshlrev_b32 v{v}, 16, v{v+1}\nv_and_b32 v{v+1}, 0xffff0000, v{v+1}")
def div7(g, src): g(f"s_mul_i32 s39, s{src}, 9363\ns_lshr_b32 s39, s39, 16\ns_mul_i32 s40, s39, 7\ns_sub_u32 s38, s{src}, s40\ns_mul_i32 s42, s39, {128*896}\ns_lshl_b32 s40, s38, 7\ns_add_u32 s42, s42, s40")

def helper(g):
    o=g.o
    g("s_setprio 3")
    srd(g, 44, 16, 7168)
    X=PA
    g(f"""s_mul_i32 s38, s3, 1792
    v_lshl_add_u32 v{T0}, v1, 4, s38""")
    for k in range(8): g(f"v_mov_b32 v{X+k}, 0")
    g(f"""s_mov_b32 exec_hi, 0xffffff
    buffer_load_dwordx4 {r(X,4)}, v{T0}, s[44:47], 0 offen
    buffer_load_dwordx4 {r(X+4,4)}, v{T0}, s[44:47], 0 offen offset:896
    s_mov_b32 exec_hi, -1""")
    wq_setup(g, 4)
    g(f"s_lshl_b32 s38, s3, 10\ns_add_u32 m0, s38, {L_W0}\ns_lshl_b32 s38, s3, 18")
    for n in range(4):
        if n==3: g("s_cmp_ge_u32 s3, 2\ns_cbranch_scc1 L_wq3")
        g(f"buffer_load_dwordx4 v2, s[4:7], s38 offen {WF} lds\ns_add_u32 m0, m0, 4096\ns_add_u32 s38, s38, {128*8192}")
    g(f"""L_wq3:
    s_barrier
    s_mul_i32 s38, s3, {2*XNS}
    v_lshl_add_u32 v{T0+1}, v1, 4, s38""")
    g.ts(1)
    g(f"""v_and_b32 v4, 15, v1
    v_lshrrev_b32 v5, 4, v1
    s_mov_b32 s54, 0
    s_mov_b32 s55, -1
    s_mov_b32 s56, 0xaaaaaaaa
    s_mov_b32 s57, 0xaaaaaaaa
    v_lshlrev_b32 v64, 8, v5
    v_lshl_add_u32 v64, v4, 3, v64
    v_lshrrev_b32 v7, 2, v4
    v_lshlrev_b32 v65, 10, v5
    v_lshl_add_u32 v65, v7, 7, v65
    v_and_b32 v7, 3, v4
    v_lshl_add_u32 v65, v7, 3, v65
    v_and_b32 v7, 7, v4
    v_mul_u32_u24 v66, {XNS}, v7
    v_lshl_add_u32 v66, v5, 4, v66
    v_and_b32 v6, 1, v5
    v_lshlrev_b32 v6, 2, v6
    v_and_b32 v7, 2, v5
    v_add_u32 v6, v6, v7
    v_and_b32 v7, 1, v4
    v_add_u32 v67, v6, v7
    v_lshrrev_b32 v7, 1, v4
    v_lshlrev_b32 v68, 3, v7
    v_lshl_add_u32 v69, v67, 6, v68
    v_lshlrev_b32 v70, 4, v1
    s_lshl_b32 s38, s73, 9
    s_add_u32 s38, s38, {W_Q}
    s_bfe_u32 s39, s2, 0x30002
    s_lshl_b32 s39, s39, 14
    s_lshr_b32 s40, s2, 5
    s_lshl_b32 s40, s40, 6
    s_add_u32 s39, s39, s40
    s_add_u32 s39, s39, {W_Q}
    s_add_u32 s42, s39, 8192
    v_lshrrev_b32 v71, 2, v1
    v_lshlrev_b32 v71, 9, v71
    v_and_b32 v7, 3, v1
    v_lshl_add_u32 v71, v7, 4, v71
""")
    F=VQ; t=VQ+16
    def red64(v):
        for c in ("quad_perm:[1,0,3,2]","quad_perm:[2,3,0,1]","row_ror:4","row_ror:8"):
            g(f"s_nop 0\nv_add_f32_dpp v{v}, v{v}, v{v} {c} {DPPA}\nv_add_f32_dpp v{v+1}, v{v+1}, v{v+1} {c} {DPPA}")
        for sw in ("16","32"):
            g(f"""v_mov_b32 v{t+8}, v{v}
            v_mov_b32 v{t+9}, v{v+1}
            s_nop 0
            v_permlane{sw}_swap_b32 v{v}, v{t+8}
            v_permlane{sw}_swap_b32 v{v+1}, v{t+9}
            v_add_f32 v{v}, v{v}, v{t+8}
            v_add_f32 v{v+1}, v{v+1}, v{t+9}""")
        g(f"v_mul_f32 v{v}, {f2u(1/448):#x}, v{v}\nv_mul_f32 v{v+1}, {f2u(1/448):#x}, v{v+1}")
    def rb2(v): g(f"v_cvt_pk_bf16_f32 v{v+1}, v{v}, v{v+1}\nv_lshlrev_b32 v{v}, 16, v{v+1}\nv_and_b32 v{v+1}, 0xffff0000, v{v+1}")
    g(f"s_waitcnt vmcnt(3)")
    for n in range(8): g(f"v_lshlrev_b32 v{F+2*n}, 16, v{X+n}\nv_and_b32 v{F+2*n+1}, 0xffff0000, v{X+n}")
    g(f"v_add_f32 v{t}, v{F}, v{F+1}\nv_add_f32 v{t+1}, v{F+8}, v{F+9}")
    for k in range(2,8): g(f"v_add_f32 v{t}, v{t}, v{F+k}\nv_add_f32 v{t+1}, v{t+1}, v{F+8+k}")
    red64(t)
    g(f"v_mov_b32 v{t+2}, 0\nv_mov_b32 v{t+3}, 0\ns_mov_b32 exec_hi, 0xffffff")
    for k in range(16): g(f"v_sub_f32 v{t+4}, v{F+k}, v{t+(k>>3)}\nv_fmac_f32 v{t+2+(k>>3)}, v{t+4}, v{t+4}")
    g("s_mov_b32 exec_hi, -1\ns_nop 0")
    red64(t+2)
    rb2(t); rb2(t+2)
    g(f"v_add_f32 v{t+2}, {f2u(1e-5):#x}, v{t+2}\nv_add_f32 v{t+3}, {f2u(1e-5):#x}, v{t+3}"); rb2(t+2)
    g(f"v_sqrt_f32 v{t+2}, v{t+2}\nv_sqrt_f32 v{t+3}, v{t+3}\ns_nop 0"); rb2(t+2)
    g(f"v_rcp_f32 v{t+4}, v{t+2}\nv_rcp_f32 v{t+5}, v{t+3}")
    for k in range(16): g(f"v_sub_f32 v{F+k}, v{F+k}, v{t+(k>>3)}")
    for n in range(8): rb2(F+2*n)
    for k in range(16): g(f"v_mul_f32 v{t+6}, v{F+k}, v{t+4+(k>>3)}\nv_fma_f32 v{F+k}, -v{t+6}, v{t+2+(k>>3)}, v{F+k}\nv_fma_f32 v{F+k}, v{F+k}, v{t+4+(k>>3)}, v{t+6}")
    for n in range(8): g(f"v_cvt_pk_bf16_f32 v{X+n}, v{F+2*n}, v{F+2*n+1}")
    g(f"""s_mov_b32 exec_hi, 0xffffff
    ds_write_b128 v{T0+1}, {r(X,4)} offset:{L_XN}
    ds_write_b128 v{T0+1}, {r(X+4,4)} offset:{L_XN+XNS}
    s_mov_b32 exec_hi, -1
    s_waitcnt vmcnt(0)""")
    def bump(off): g(f"s_waitcnt vmcnt(0) lgkmcnt(0)\nv_mov_b32 v6, 0\nv_mov_b32 v7, 1\ns_mov_b64 exec, 1\nds_add_u32 v6, v7 offset:{L_CNT+off}\ns_mov_b64 exec, -1")
    def ldswait(off, cmp, val, sleep):
        l=g.lab("lw")
        g(f"v_mov_b32 v6, 0\n{l}:" + (f"\ns_sleep {sleep}" if sleep else "") + f"\nds_read_b32 v7, v6 offset:{L_CNT+off}\ns_waitcnt lgkmcnt(0)\nv_readfirstlane_b32 s40, v7\ns_cmp_{cmp}_u32 s40, {val}\ns_cbranch_scc1 {l}")
    bump(4)
    g("s_cmp_lg_u32 s3, 0\ns_cbranch_scc1 L_b1")
    ldswait(4, "lt", 4, 0)
    g.ts(2)
    for s in range(14): g(f"ds_read_b128 {r(XA+4*s,4)}, v66 offset:{L_XN+64*s}")
    proj_mma(g, D0, L_W0)
    g(f"v_mov_b32 v{RW+1}, s33\ns_nop 6")
    pairpack(g, D0, D0+4)
    g(f"v_cvt_pk_bf16_f32 v{RW}, v{D0+4}, v{D0+5}\nbuffer_store_dwordx2 {r(RW,2)}, v69, s[12:15], s38 offen sc1")
    g.ts(3)
    if o.get('pp'):
        def qp(k): g(f"buffer_load_dwordx4 {r(BW+8*k,4)}, v71, s[12:15], s39 offen sc1\nbuffer_load_dwordx4 {r(BW+8*k+4,4)}, v71, s[12:15], s42 offen sc1\ns_sleep {o['pp']}")
        NP=4
        for k in range(NP-1): qp(k)
        g(f"s_mov_b32 s41, {SPIN}\nL_qp:")
        for k in range(NP):
            qp((k+NP-1)%NP)
            g(f"s_waitcnt vmcnt({2*NP-2})")
            for x in range(8): g(f"v_mov_b32 v{RW+4+x}, v{BW+8*k+x}")
            tagchk(g,[RW+5,RW+7,RW+9,RW+11],BT); g("s_cbranch_vccz L_qok")
        g("s_sub_u32 s41, s41, 1\ns_cmp_lg_u32 s41, 0\ns_cbranch_scc1 L_qp\nL_qok:")
    else:
        l=spin_begin(g,"q")
        g(f"buffer_load_dwordx4 {r(RW+4,4)}, v71, s[12:15], s39 offen sc1\nbuffer_load_dwordx4 {r(RW+8,4)}, v71, s[12:15], s42 offen sc1\ns_waitcnt vmcnt(0)")
        tagchk(g,[RW+5,RW+7,RW+9,RW+11],BT); spin_end(g,l,0)
    g(f"""v_lshlrev_b32 v6, 3, v1
    v_add_u32 v6, {L_Q}, v6
    ds_write2_b32 v6, v{RW+4}, v{RW+6} offset0:0 offset1:1
    ds_write2_b32 v6, v{RW+8}, v{RW+10} offset0:128 offset1:129
    s_waitcnt lgkmcnt(0)
    L_b1:
    s_barrier""")
    g.ts(4)
    if o.get('noside'): g("s_branch L_hend")
    g("s_cmp_ge_u32 s2, 224\ns_cbranch_scc1 L_nowo")
    div7(g, 2)
    g(f"""v_lshrrev_b32 v2, 4, v1
    v_bfe_u32 v7, v1, 3, 1
    v_lshl_add_u32 v2, v2, 3, v7
    v_mul_u32_u24 v2, 896, v2
    v_and_b32 v7, 7, v1
    v_lshl_add_u32 v2, v7, 4, v2""")
    srd(g, 8, 24, 4096*896)
    g(f"s_mul_i32 s40, s3, {2*896}\ns_add_u32 s42, s42, s40\ns_lshl_b32 s40, s3, 12\ns_add_u32 m0, s40, {L_W1}\ns_nop 0")
    for n in range(4): g(f"buffer_load_dwordx4 v2, s[8:11], s42 offen nt lds\ns_add_u32 m0, m0, 1024\ns_add_u32 s42, s42, {32*896}")
    g("L_nowo:")
    if o.get('noj23'): g("s_mov_b32 s58, 99")
    elif o.get('claim'):
        g("s_cmp_lg_u32 s3, 0\ns_cbranch_scc1 L_getjob")
        srd(g, 60, 68, 256)
        ldswait(0, "lt", o['claim'], 16)
        g(f"""v_mov_b32 v7, 1
        s_mov_b64 exec, 1
        buffer_atomic_add v7, v6, s[60:63], 0 offen sc0 sc1
        s_waitcnt vmcnt(0)
        v_add_u32 v7, 1, v7
        ds_write_b32 v6, v7 offset:{L_CNT+8}
        s_mov_b64 exec, -1
        L_getjob:""")
        ldswait(8, "eq", 0, 16)
        g("s_sub_u32 s58, s40, 1")
    else:
        g("s_and_b32 s40, s2, 3\ns_bfe_u32 s58, s2, 0x20003\ns_cmp_lg_u32 s40, s58\ns_cselect_b32 s40, 99, 0\ns_lshr_b32 s58, s2, 2\ns_add_u32 s58, s58, s40")
    g(f"""s_cmp_ge_u32 s58, 42
    s_cbranch_scc1 L_nojob
    s_lshl_b32 s59, s58, 7
    s_add_u32 s59, s59, {W_F}
    s_cmp_ge_u32 s58, 28
    s_cbranch_scc1 L_j3
    v_lshrrev_b32 v2, 3, v1
    v_mul_u32_u24 v2, 3584, v2
    v_and_b32 v7, 7, v1
    v_lshl_add_u32 v2, v7, 4, v2
    s_lshl_b32 s42, s58, 7""")
    def join():
        bump(12)
        g("s_cmp_lg_u32 s3, 0\ns_cbranch_scc1 L_exit")
        ldswait(12, "lt", 4, 4)
    def wpass(D, first):
        g("s_waitcnt vmcnt(0)")
        for t in range(14):
            B=BW+16*(t&1)
            for c in range(4):
                for u in range(2): g(f"ds_read_b64_tr_b16 {r(B+4*c+2*u,2)}, v71 offset:{4096*t+512*u+32*c}")
            g("s_waitcnt lgkmcnt(0)")
            for c in range(4): g(f"v_mfma_f32_16x16x32_bf16 {r(D+4*c,4)}, {r(XA+4*t,4)}, {r(B+4*c,4)}, {'0' if (t==0 and first) else r(D+4*c,4)}")
    def dmaloop(sr, lb, n_out, step_out, step_in):
        l=g.lab("dma")
        g(f"s_lshl_b32 s40, s3, 11\ns_add_u32 m0, s40, {lb}\ns_mul_i32 s40, s3, {2*step_in}\ns_add_u32 s40, s40, s42\ns_mov_b32 s41, {n_out}\n{l}:")
        g(f"""buffer_load_dwordx4 v2, s[{sr}:{sr+3}], s40 offen nt lds
        s_add_u32 m0, m0, 1024
        s_add_u32 s40, s40, {step_in}
        buffer_load_dwordx4 v2, s[{sr}:{sr+3}], s40 offen nt lds
        s_add_u32 m0, m0, 7168
        s_add_u32 s40, s40, {step_out-step_in}
        s_sub_u32 s41, s41, 1
        s_cmp_lg_u32 s41, 0
        s_cbranch_scc1 {l}""")
    D1=BW+32
    srd(g, 4, 28, 448*3584); srd(g, 44, 30, 448*3584)
    dmaloop(4, L_W0, 7, 64*3584, 8*3584); dmaloop(44, L_W0+57344, 7, 64*3584, 8*3584); join()
    g(f"v_add_u32 v71, {L_W0}, v65"); wpass(D0, True)
    g(f"v_add_u32 v71, {L_W0+57344}, v65"); wpass(D1, True)
    g("s_nop 7")
    for c in range(4):
        pairpack(g, D0+4*c, RW+4); pairpack(g, D1+4*c, RW+6); rbf2(g, RW+4); rbf2(g, RW+6)
        g(f"v_mul_f32 v{RW+4}, v{RW+4}, v{RW+6}\nv_mul_f32 v{RW+5}, v{RW+5}, v{RW+7}\nv_cvt_pk_bf16_f32 v{RW+c}, v{RW+4}, v{RW+5}")
    g(f"""v_mul_u32_u24 v69, 3584, v67
    v_lshl_add_u32 v69, v68, 1, v69
    s_lshl_b32 s38, s58, 7
    s_add_u32 s38, s38, {W_H}
    buffer_store_dwordx4 {r(RW,4)}, v69, s[12:15], s38 offen sc1
    s_branch L_flag
    L_j3:
    s_sub_u32 s38, s58, 28
    s_cmp_ge_u32 s38, 7
    s_cselect_b32 s39, 1, 0          ; K half
    s_mul_i32 s40, s39, 7
    s_sub_u32 s40, s38, s40          ; ns
    s_lshl_b32 s40, s40, 7
    s_mul_i32 s42, s39, {896*896}
    s_add_u32 s42, s42, s40
    v_lshrrev_b32 v2, 4, v1
    v_bfe_u32 v7, v1, 3, 1
    v_lshl_add_u32 v2, v2, 4, v7
    v_mul_u32_u24 v2, 896, v2
    v_and_b32 v7, 7, v1
    v_lshl_add_u32 v2, v7, 4, v2
    v_mul_u32_u24 v69, 3584, v7
    v_lshl_add_u32 v69, v5, 4, v69
    v_add_u32 v71, {L_W0}, v65
    s_mul_i32 s43, s39, 1792
    s_add_u32 s52, s43, {W_F}
    s_add_u32 s43, s43, {W_H}
""")
    srd(g, 4, 64, 1792*896); dmaloop(4, L_W0, 14, 64*896, 2*896); join()
    g("v_min_u32 v6, 13, v1\nv_lshlrev_b32 v6, 7, v6")
    l=spin_begin(g,"hf")
    g(f"buffer_load_dword v{RW}, v6, s[12:15], s52 offen sc1\ns_waitcnt vmcnt(0)")
    tagchk(g,[RW],BT); spin_end(g,l,64)
    for t in range(14): g(f"buffer_load_dwordx4 {r(XA+4*t,4)}, v69, s[12:15], s43 offen offset:{64*t} sc1")
    wpass(D0, True)
    g(f"v_add_u32 v71, {L_W0+57344}, v65\ns_nop 7")
    for t in range(14): g(f"buffer_load_dwordx4 {r(XA+4*t,4)}, v69, s[12:15], s43 offen offset:{896+64*t} sc1")
    wpass(D0, False)
    g(f"""v_and_b32 v6, 1, v5
    v_lshlrev_b32 v6, 2, v6
    v_and_b32 v7, 2, v5
    v_add_u32 v6, v6, v7
    v_lshlrev_b32 v6, 8, v6
    v_lshl_add_u32 v6, v4, 4, v6
    s_lshl_b32 s38, s38, 11
    s_add_u32 s38, s38, {W_Y}""")
    for q in range(2):
        for c in range(4): g(f"v_cndmask_b32 v{RW+4*q+c}, v{D0+4*c+q}, v{D0+4*c+2+q}, s[54:55]")
        g(f"buffer_store_dwordx4 {r(RW+4*q,4)}, v6, s[12:15], s38 offen offset:{256*q} sc1")
    g(f"""L_flag:
    s_waitcnt vmcnt(0)
    v_mov_b32 v6, s33
    s_mov_b64 exec, 1
    buffer_store_dword v6, v70, s[12:15], s59 offen sc1
    s_mov_b64 exec, -1
    s_branch L_noj3
    L_nojob:""")
    join()
    g(f"""L_noj3:
    s_cmp_ge_u32 s2, 224
    s_cbranch_scc1 L_hend""")
    div7(g, 2)
    g("v_and_b32 v7, 7, v1")
    g(f"""s_lshl_b32 s43, s38, 14
    s_lshl_b32 s40, s39, 7
    s_add_u32 s43, s43, s40
    s_add_u32 s43, s43, {W_S}
    s_lshr_b32 s38, s2, 1
    s_lshl_b32 s38, s38, 6
    s_and_b32 s40, s2, 1
    s_lshl_b32 s40, s40, 4
    s_add_u32 s38, s38, s40
    v_lshl_add_u32 v36, v7, 1, s38""")
    srd(g, 44, 16, 7168); srd(g, 48, 66, 7168)
    g(f"buffer_load_ushort v34, v36, s[44:47], 0 offen\nbuffer_load_ushort v35, v36, s[44:47], 0 offen offset:32\ns_waitcnt vmcnt(0)")
    wslice_regs(g, L_W1); joboff(g, 4096)
    g(f"""v_lshlrev_b32 v34, 16, v34
    v_lshlrev_b32 v35, 16, v35
    v_mul_u32_u24 v38, {AS}, v7
    v_lshl_add_u32 v38, v5, 4, v38
    s_mul_i32 s38, s2, 2341
    s_lshr_b32 s38, s38, 16          ; b = w/28
    s_mul_i32 s39, s38, 28
    s_sub_u32 s39, s2, s39
    s_lshr_b32 s40, s39, 2           ; ns
    s_lshl_b32 s52, s40, 7
    s_add_u32 s52, s52, {W_F+28*128}
    s_lshl_b32 s40, s40, 11
    s_lshl_b32 s38, s38, 8
    s_add_u32 s38, s38, s40
    s_and_b32 s40, s39, 1
    s_lshl_b32 s40, s40, 7
    s_add_u32 s38, s38, s40
    s_and_b32 s40, s39, 2
    s_lshl_b32 s40, s40, 2
    s_add_u32 s38, s38, s40
    s_add_u32 s38, s38, {W_Y}
    v_bfe_u32 v39, v1, 3, 1
    v_mul_u32_u24 v37, 896, v39
    v_mul_u32_u24 v39, 14336, v39
    v_lshl_add_u32 v39, v7, 4, v39""")
    g.ts(5)
    if o.get('notail'): g("s_branch L_hend")
    g("s_barrier")
    l=spin_begin(g,"y")
    g(f"buffer_load_dword v{RW}, v37, s[12:15], s52 offen sc1\ns_waitcnt vmcnt(0)")
    tagchk(g,[RW],BT)
    if o.get('noj23'): g("s_mov_b64 vcc, 0")
    spin_end(g,l,8)
    g(f"""buffer_load_dwordx2 v[32:33], v39, s[12:15], s38 offen sc1
    s_waitcnt vmcnt(0)
    v_add_f32_dpp v32, v32, v32 row_ror:8 {DPPA}
    v_add_f32_dpp v33, v33, v33 row_ror:8 {DPPA}""")
    rbf2(g,32)
    for v in (32,33):
        g(f"""v_mul_f32 v{BT}, {f2u(-1.4426950408889634):#x}, v{v}
        v_exp_f32 v{BT}, v{BT}
        s_nop 0
        v_add_f32 v{BT}, 1.0, v{BT}
        v_rcp_f32 v{BT}, v{BT}
        s_nop 0
        v_mul_f32 v{v}, v{v}, v{BT}""")
    rbf2(g,32)
    g(f"s_lshl_b32 s38, s2, 12\ns_add_u32 s38, s38, {W_S}\ns_barrier")
    for t in range(4): g(f"ds_read_b128 {r(XA+4*t,4)}, v38 offset:{L_A+64*t}")
    g("s_waitcnt lgkmcnt(0)")
    wslice_mma_store(g, XA, 4096)
    g.ts(6)
    R2=RW+16
    l=spin_begin(g,"s")
    for n in range(4): g(f"buffer_load_dwordx4 {r(R2+4*n,4)}, v70, s[12:15], s38 offen offset:{1024*n} sc1")
    g("s_waitcnt vmcnt(0)")
    tagchk(g,[R2+1+2*k for k in range(8)],BT); spin_end(g,l,o.get('sl_s',1))
    g(f"""v_add_f32 v{R2}, v{R2}, v{R2+4}
    v_add_f32 v{R2+2}, v{R2+2}, v{R2+6}
    v_add_f32 v{R2+8}, v{R2+8}, v{R2+12}
    v_add_f32 v{R2+10}, v{R2+10}, v{R2+14}
    v_add_f32 v30, v{R2}, v{R2+8}
    v_add_f32 v31, v{R2+2}, v{R2+10}""")
    red8x2(g,30,BT); rbf2(g,30)
    g("v_mul_f32 v30, v30, v32\nv_mul_f32 v31, v31, v33"); rbf2(g,30)
    g(f"""v_add_f32 v30, v30, v34
    v_add_f32 v31, v31, v35
    v_cvt_pk_bf16_f32 v31, v30, v31
    s_mov_b64 exec, 0xff
    buffer_store_short v31, v36, s[48:51], 0 offen
    buffer_store_short_d16_hi v31, v36, s[48:51], 0 offen offset:32
    s_cmp_lg_u32 s2, 0
    s_cbranch_scc1 L_hend
    s_mov_b64 exec, 1
    v_mov_b32 v30, s33
    buffer_store_dword v30, v70, s[12:15], 0 offen sc1
    L_hend:""")
    g.ts(7); g.tsdump()
    g("s_endpgm")

def build(opt):
    g=G(opt)
    hdr=open("cdna_kernels/"+NAME+".s.ref").read().split("; Override launch")[0]
    g.L.append(hdr+f"; @launch grid=(256,1,1) block=(512,1,1) lds={LDS}")
    g.L.append(f'.amdgcn_target "amdgcn-amd-amdhsa--gfx950"\n.text\n.globl {NAME}_kernel\n.p2align 8\n.type {NAME}_kernel,@function\n{NAME}_kernel:')
    g.ts(0)
    g(f"""s_cmp_ge_u32 s2, 256
    s_cbranch_scc1 L_exit
    s_load_dwordx16 s[16:31], s[0:1], 0
    s_load_dwordx8 s[64:71], s[0:1], 64
    v_lshrrev_b32 v2, 6, v0
    v_and_b32 v1, 63, v0
    v_mov_b32 v6, 0
    v_mov_b32 v8, {12 if opt.get('nl') else 8}
    v_mov_b32 v9, 0
    v_mov_b32 v10, 0
    v_mov_b32 v11, 0
    ds_write_b128 v6, v[8:11] offset:{L_CNT}
    v_readfirstlane_b32 s3, v2
    s_waitcnt lgkmcnt(0)
    s_load_dword s72, s[70:71], 0""")
    srd(g, 12, 70, W_END)
    g("s_cmp_lt_u32 s3, 4\ns_cbranch_scc1 L_helper")
    mark=len(g.L); stream(g)
    g("L_helper:"); mark2=len(g.L); helper(g)
    for m in (mark2, mark):
        k=next(i for i in range(m,len(g.L)) if g.L[i].strip()=="s_waitcnt lgkmcnt(0)")
        g.L.insert(k+1,"  s_add_u32 s33, s72, 0x9e3779b9")
    g("L_exit:\ns_endpgm")
    g.L.append(f""".section .rodata,"a"
.p2align 6
.amdhsa_kernel {NAME}_kernel
  .amdhsa_next_free_vgpr 224
  .amdhsa_next_free_sgpr 102
  .amdhsa_accum_offset 224
  .amdhsa_group_segment_fixed_size 0
  .amdhsa_kernarg_size 96
  .amdhsa_user_sgpr_count 2
  .amdhsa_user_sgpr_kernarg_segment_ptr 1
  .amdhsa_system_sgpr_workgroup_id_x 1
.end_amdhsa_kernel""")
    return "\n".join(g.L)+"\n"

if __name__=="__main__":
    opt=eval(sys.argv[2]) if len(sys.argv)>2 else {}
    open(sys.argv[1],"w").write(build(opt))
```

```python
import sys, struct
NAME = "recurrent_scan__gqa_block_cached__glu_gated_bilinear__decode"
def f2u(x): return struct.unpack('<I', struct.pack('<f', x))[0]
CSC = f2u(0.0625*1.4426950408889634)
W_Q, W_H, W_Y, W_S, W_P, W_ML, W_TS, W_END = 0x1000, 0x21000, 0x30000, 0xA0000, 0x180000, 0x280000, 0x290000, 0x300000
L_XN, XNS = 0, 912
L_Q = 7424
L_O = 8448
L_ML = 16640
L_A, AS = 16704, 272
L_CNT = 18944
L_W0, L_W1 = 35840, 19456
LDS = 35840+114688
W_F = 0x28000
DPPA = "row_mask:0xf bank_mask:0xf"
SPIN = 20000

class G:
    def __init__(s, opt): s.L=[]; s.o=opt; s.n=0
    def __call__(s, t):
        for ln in t.split("\n"):
            ln=ln.strip()
            if ln: s.L.append(ln if ln.endswith(":") else "  "+ln)
    def lab(s, p): s.n+=1; return f"L_{p}_{s.n}"
    def ts(s, k):
        if s.o.get('ts'): s(f"s_memrealtime s[{80+2*k}:{81+2*k}]")
    def tsdump(s, role=0):
        if not s.o.get('ts'): return
        if s.o.get('ts')==2:
            srd(s, 60, 68, 256)
            s("s_waitcnt lgkmcnt(0)\ns_mov_b64 exec, 1\nv_mov_b32 v7, 0\ns_cmp_ge_u32 s2, 224\ns_cbranch_scc1 L_exit")
            items=[(1,0,1),(2,2,0),(3,7,1),(4,7,0),(5,3,1),(6,3,0),(7,0,0)] if role else [(8,2,0),(9,3,0),(10,5,0),(11,6,0),(12,7,0)]
            for w,k,inv in items:
                s(f"v_{'not' if inv else 'mov'}_b32 v{8+w}, s{80+2*k}\nbuffer_atomic_umax v{8+w}, v7, s[60:63], 0 offen offset:{4*w} sc1")
            return
        s("s_waitcnt lgkmcnt(0)\ns_mov_b64 exec, 1")
        for k in range(8): s(f"v_mov_b32 v{8+k}, s{80+2*k}")
        s(f"s_mul_i32 s40, s2, 8\ns_add_u32 s40, s40, s3\ns_lshl_b32 s40, s40, 5\ns_add_u32 s40, s40, {W_TS}\nv_mov_b32 v7, 0")
        s("buffer_store_dwordx4 v[8:11], v7, s[12:15], s40 offen\nbuffer_store_dwordx4 v[12:15], v7, s[12:15], s40 offen offset:16")

def r(b, n): return f"v[{b}:{b+n-1}]"

def red_g(g, op, v, t):
    g(f"""v_mov_b32 v{t}, v{v}
    s_nop 1
    v_permlane32_swap_b32 v{v}, v{t}
    s_nop 0
    {op} v{v}, v{v}, v{t}
    v_mov_b32 v{t}, v{v}
    s_nop 1
    v_permlane16_swap_b32 v{v}, v{t}
    s_nop 0
    {op} v{v}, v{v}, v{t}""")

def spin_begin(g, p):
    l=g.lab(p); g(f"s_mov_b32 s41, {SPIN}\n{l}:"); return l
def spin_end(g, l, sleep):
    d=g.lab("dn")
    g(f"""s_cbranch_vccz {d}
    s_sub_u32 s41, s41, 1
    s_cmp_eq_u32 s41, 0
    s_cbranch_scc1 {d}
    s_sleep {sleep}
    s_branch {l}
    {d}:""")
def tagchk(g, regs, t):
    g(f"v_xor_b32 v{t}, s33, v{regs[0]}")
    for x in regs[1:]: g(f"v_xor_b32 v{t+1}, s33, v{x}\nv_or_b32 v{t}, v{t}, v{t+1}")
    g(f"v_cmp_ne_u32 vcc, 0, v{t}\ns_nop 4")

def srd(g, d, p, size): g(f"s_mov_b32 s{d}, s{p}\ns_mov_b32 s{d+1}, s{p+1}\ns_mov_b32 s{d+2}, {size}\ns_mov_b32 s{d+3}, 0x20000")

VK, VV, VQ, KB, S0, ACC, VM, VL, T0, PA, PB = 2, 3, 8, 40, 168, 172, 180, 181, 182, 192, 208
VKA, VVA, VONE, VIDX, VQ4, VK4 = 190, 191, 6, 7, 216, 189
VSC = 188
def buf(s): return KB+32*s
def ld(g, form, s, lds=False):
    g(f"v_add_u32 v{VKA}, s34, v{dict(r=VK,q=VK4,v=VV)[form]}\ns_add_u32 s34, s34, 0x8000")
    st=64 if form=='r' else 256; sr="s[8:11]" if form=='v' else "s[4:7]"
    for j in range(8):
        if lds: g(f"buffer_load_dwordx4 v{VKA}, {sr}, 0 offen offset:{st*j} nt lds\ns_add_u32 m0, m0, {1024-st if j<7 else 1024+7*st}\ns_nop 0")
        else: g(f"buffer_load_dwordx4 {r(buf(s)+4*j,4)}, v{VKA}, {sr}, 0 offen offset:{st*j} nt")
def tick(g): g(f"s_mov_b64 exec, 1\nds_add_u32 v4, v{VONE} offset:{L_CNT}\ns_mov_b64 exec, -1")
def unpack(g, t): g(f"v_lshlrev_b32 v{S0}, 16, v{t}\nv_and_b32 v{S0+1}, 0xffff0000, v{t}\nv_lshlrev_b32 v{S0+2}, 16, v{t+1}\nv_and_b32 v{S0+3}, 0xffff0000, v{t+1}")
def kstep(g, s, form, wait, nxt):
    tick(g)
    g(f"s_waitcnt vmcnt({wait})")
    if form=='q':
        for hf in range(2):
            for tt in range(4): g(f"v_mfma_f32_16x16x32_bf16 {r(PA+4*tt,4)}, {r(buf(s)+4*(2*tt+hf),4)}, {r(VQ4+4*hf,4)}, {'0' if hf==0 else r(PA+4*tt,4)}")
    else:
        for j in range(8): g(f"v_mfma_f32_16x16x32_bf16 {r(S0,4)}, {r(buf(s)+4*j,4)}, {r(VQ+4*j,4)}, {'0' if j==0 else r(S0,4)}")
    if nxt: ld(g, nxt, s)
    else: g("s_nop 7")
    if form=='q':
        for tt in range(4): g(f"v_cndmask_b32 v{PA+4*tt}, v{PA+4*tt}, v{PA+4*tt+1}, s[44:45]\nv_cndmask_b32 v{PA+4*tt+2}, v{PA+4*tt+2}, v{PA+4*tt+3}, s[44:45]")
        for tt in range(4): g(f"v_cndmask_b32 v{S0+tt}, v{PA+4*tt}, v{PA+4*tt+2}, s[46:47]")
        for c in (4,8):
            for tt in range(4): g(f"v_add_f32_dpp v{S0+tt}, v{S0+tt}, v{S0+tt} row_ror:{c} {DPPA}")
    t=T0
    g(f"v_cvt_pk_bf16_f32 v{t}, v{S0}, v{S0+1}\nv_cvt_pk_bf16_f32 v{t+1}, v{S0+2}, v{S0+3}\nds_write_b64 v{VSC}, {r(t,2)} offset:{L_O}")
    unpack(g, t)
    g(f"v_add_u32 v{VSC}, 64, v{VSC}\nv_max3_f32 v{VM}, v{S0}, v{S0+1}, v{VM}\nv_max3_f32 v{VM}, v{S0+2}, v{S0+3}, v{VM}")
def vstep(g, s, wait, nxt):
    t=T0
    tick(g)
    g(f"ds_read_b64 {r(t,2)}, v{VSC} offset:{L_O}\nv_add_u32 v{VSC}, 64, v{VSC}\ns_waitcnt lgkmcnt(0)")
    unpack(g, t)
    for k in range(4): g(f"v_fma_f32 v{S0+k}, v{S0+k}, s35, -v{t+4}")
    for k in range(4): g(f"v_exp_f32 v{S0+k}, v{S0+k}")
    g(f"""v_add_f32 v{VL}, v{VL}, v{S0}
    v_cvt_pk_bf16_f32 v{t+2}, v{S0}, v{S0+1}
    v_cvt_pk_bf16_f32 v{t+3}, v{S0+2}, v{S0+3}
    v_add_f32 v{S0+1}, v{S0+1}, v{S0+2}
    v_add_f32 v{VL}, v{VL}, v{S0+3}
    v_add_f32 v{VL}, v{VL}, v{S0+1}""")
    for e in range(8): g(f"v_cndmask_b32 v{PA+2*e}, 0, v{t+2}, s[{48+2*e}:{49+2*e}]\nv_cndmask_b32 v{PA+2*e+1}, 0, v{t+3}, s[{48+2*e}:{49+2*e}]")
    g(f"s_waitcnt vmcnt({wait})")
    V=buf(s); TB=buf(2)
    for n in range(16):
        a,e=n>>3,n&7; sel=36+(e&1); d=4*a+(e>>1)
        g(f"v_perm_b32 v{TB+2*n}, v{V+8+d}, v{V+d}, s{sel}\nv_perm_b32 v{TB+2*n+1}, v{V+24+d}, v{V+16+d}, s{sel}")
    if nxt: ld(g, 'v', s)
    for n in range(16):
        a,e=n&1,n>>1
        g(f"v_mfma_f32_16x16x16_bf16 {r(ACC+4*a,4)}, {r(PA+2*e,2)}, {r(TB+2*(8*a+e),2)}, {r(ACC+4*a,4)}")

def stream(g):
    o=g.o
    g(f"""s_sub_u32 s32, s3, 4
    s_lshl_b32 s4, s2, 20
    s_add_u32 s8, s20, s4
    s_addc_u32 s9, s21, 0
    s_add_u32 s4, s18, s4
    s_addc_u32 s5, s19, 0
    s_mov_b32 s6, 0x100000
    s_mov_b32 s7, 0x20000
    s_mov_b32 s10, 0x100000
    s_mov_b32 s11, 0x20000""")
    g(f"""v_and_b32 v4, 15, v1
    v_lshrrev_b32 v5, 4, v1
    v_lshlrev_b32 v{VK}, 9, v4
    v_lshl_add_u32 v{VK}, v5, 4, v{VK}
    v_lshlrev_b32 v{VV}, 11, v5
    v_lshl_add_u32 v{VV}, v4, 4, v{VV}
    s_lshl_b32 s34, s32, 13""")
    P0,P1=o.get('p0','rqrqrq'),o.get('p1','rq')
    g(f"v_lshrrev_b32 v6, 2, v4\nv_lshlrev_b32 v{VK4}, 11, v6\nv_lshl_add_u32 v{VK4}, v5, 6, v{VK4}\nv_and_b32 v6, 3, v4\nv_lshl_add_u32 v{VK4}, v6, 4, v{VK4}")
    g("s_barrier")
    for k in range(4): ld(g, P0[k], k)
    g(f"s_lshl_b32 s38, s32, 14\ns_add_u32 s38, s38, {L_W0+16384}\ns_mov_b32 m0, s38\nv_lshl_add_u32 v{T0+5}, v1, 4, s38")
    ld(g, P0[4], 0, True); ld(g, P0[5], 0, True)
    g.ts(1)
    g(f"s_mov_b32 s35, {CSC}\ns_mov_b32 s36, 0x05040100\ns_mov_b32 s37, 0x07060302")
    for e in range(8):
        m=0
        for i in range(16):
            if (i&1)+2*(i>>2)==e: m|=1<<i
        m|=m<<16
        g(f"s_mov_b32 s{48+2*e}, {m:#x}\ns_mov_b32 s{49+2*e}, {m:#x}")
    g(f"v_mov_b32 v{VONE}, 1")
    for k in range(8): g(f"v_mov_b32 v{ACC+k}, 0")
    g(f"v_mov_b32 v{VM}, 0xff800000\nv_mov_b32 v{VL}, 0")
    g(f"""v_bfe_u32 v{T0}, v1, 1, 1
    v_lshlrev_b32 v{T0}, 9, v{T0}
    v_lshl_add_u32 v{T0+2}, v5, 6, v{T0}
    v_lshl_add_u32 v{T0}, v5, 4, v{T0}
    v_lshrrev_b32 v7, 2, v4
    v_lshl_add_u32 v{T0+2}, v7, 4, v{T0+2}
    s_mov_b32 s44, 0xf0f0f0f0
    s_mov_b32 s45, s44
    s_mov_b32 s46, 0xff00ff00
    s_mov_b32 s47, s46
    s_barrier""")
    g.ts(2)
    for j in range(2): g(f"ds_read_b128 {r(VQ4+4*j,4)}, v{T0+2} offset:{L_Q+256*j}")
    for j in range(8): g(f"ds_read_b128 {r(VQ+4*j,4)}, v{T0} offset:{L_Q+64*j}")
    g("s_waitcnt lgkmcnt(0)")
    def scaddr(): g(f"s_lshl_b32 s38, s32, 11\nv_and_b32 v{VSC}, 2, v1\nv_lshl_add_u32 v{VSC}, v{VSC}, 2, s38\nv_lshl_add_u32 v{VSC}, v5, 4, v{VSC}")
    def loop(n, body):
        l=g.lab("run"); g(f"s_mov_b32 s38, {n}\n{l}:"); body(); g(f"s_sub_u32 s38, s38, 1\ns_cmp_lg_u32 s38, 0\ns_cbranch_scc1 {l}")
    scaddr()
    kstep(g,0,P0[0],40,P1[0]); kstep(g,1,P0[1],40,P1[1]); kstep(g,2,P0[2],40,None); kstep(g,3,P0[3],32,None)
    g("s_waitcnt vmcnt(16)")
    for j in range(16): g(f"ds_read_b128 {r(buf(2)+4*j,4)}, v{T0+5} offset:{1024*j}")
    g("s_waitcnt lgkmcnt(0)")
    kstep(g,2,P0[4],16,None); kstep(g,3,P0[5],16,None)
    loop(12, lambda: (kstep(g,0,P1[0],8,P1[0]), kstep(g,1,P1[1],8,P1[1])))
    g("s_lshl_b32 s34, s32, 13")
    kstep(g,0,P1[0],8,'v'); kstep(g,1,P1[1],8,'v')
    red_g(g, "v_max_f32", VM, T0)
    g(f"v_mul_f32 v{T0+4}, s35, v{VM}")
    scaddr()
    g.ts(7)
    loop(15, lambda: (vstep(g,0,8,True), vstep(g,1,8,True)))
    vstep(g,0,8,False); vstep(g,1,0,False)
    g.ts(3)
    if o.get('noside') or o.get('notail'): g("s_branch L_send")
    red_g(g, "v_add_f32", VL, T0)
    g(f"""s_lshl_b32 s38, s32, 11
    v_lshl_add_u32 v{T0}, v1, 4, s38
    v_and_b32 v{T0+1}, 2, v1
    v_lshlrev_b32 v{T0+1}, 2, v{T0+1}
    v_lshl_add_u32 v{T0+1}, s32, 4, v{T0+1}
    ds_write_b128 v{T0}, {r(ACC,4)} offset:{L_O}
    ds_write_b128 v{T0}, {r(ACC+4,4)} offset:{L_O+1024}
    ds_write_b64 v{T0+1}, {r(VM,2)} offset:{L_ML}
    s_lshr_b32 s38, s32, 1
    s_and_b32 s39, s32, 1
    s_lshl_b32 s40, s38, 10
    s_lshl_b32 s42, s39, 3
    s_add_u32 s40, s40, s42
    v_lshl_add_u32 v{T0}, v1, 4, s40
    v_mov_b32 v{T0+1}, s42
    s_lshr_b32 s40, s2, 2
    s_and_b32 s40, s40, 7
    s_lshl_b32 s40, s40, 1
    s_add_u32 s40, s40, s39          ; hq
    s_lshr_b32 s42, s2, 5
    s_lshl_b32 s42, s42, 2
    s_and_b32 s43, s2, 3
    s_add_u32 s42, s42, s43          ; b*4+p
    s_lshl_b32 s43, s40, 5
    s_add_u32 s43, s43, s42
    s_lshl_b32 s43, s43, 4
    s_add_u32 s43, s43, {W_ML}
    s_lshl_b32 s40, s40, 1
    s_add_u32 s40, s40, s38
    s_lshl_b32 s40, s40, 5
    s_add_u32 s40, s40, s42
    s_lshl_b32 s40, s40, 10
    s_add_u32 s40, s40, {W_P}        ; P slot
    v_lshlrev_b32 v4, 4, v1
    s_waitcnt lgkmcnt(0)
    s_barrier""")
    for w in range(4): g(f"ds_read_b64 {r(8+2*w,2)}, v{T0+1} offset:{L_ML+16*w}")
    for w in range(4): g(f"ds_read_b64 {r(16+2*w,2)}, v{T0} offset:{L_O+2048*w}")
    g("s_waitcnt lgkmcnt(4)\nv_max3_f32 v28, v8, v10, v12\nv_max_f32 v28, v28, v14\nv_mov_b32 v25, s33\nv_mov_b32 v27, s33\nv_mov_b32 v29, s33\nv_mov_b32 v31, s33")
    for w in range(4): g(f"v_sub_f32 v{8+2*w}, v{8+2*w}, v28\nv_mul_f32 v{8+2*w}, s35, v{8+2*w}\nv_exp_f32 v{8+2*w}, v{8+2*w}")
    g("s_waitcnt lgkmcnt(0)\nv_mul_f32 v24, v8, v16\nv_mul_f32 v26, v8, v17\nv_mul_f32 v30, v8, v9")
    for w in range(1,4): g(f"v_fmac_f32 v24, v{8+2*w}, v{16+2*w}\nv_fmac_f32 v26, v{8+2*w}, v{17+2*w}\nv_fmac_f32 v30, v{8+2*w}, v{9+2*w}")
    g(f"""buffer_store_dwordx4 v[24:27], v4, s[12:15], s40 offen sc1
    s_cmp_lg_u32 s38, 0
    s_cbranch_scc1 L_noml
    s_mov_b64 exec, 1
    buffer_store_dwordx4 v[28:31], v4, s[12:15], s43 offen sc1
    s_mov_b64 exec, -1
    L_noml:""")
    g.ts(4)
    g(f"""s_cmp_ge_u32 s2, 224
    s_cbranch_scc1 L_send
    s_mul_i32 s38, s2, 9363
    s_lshr_b32 s38, s38, 16          ; ks = w/7
    s_lshr_b32 s39, s38, 1
    s_lshl_b32 s39, s39, 9
    s_lshl_b32 s40, s32, 7
    s_add_u32 s39, s39, s40
    s_add_u32 s39, s39, {W_ML}
    s_lshl_b32 s38, s38, 15
    s_lshl_b32 s40, s32, 13
    s_add_u32 s38, s38, s40
    s_add_u32 s38, s38, {W_P}
    s_add_u32 s40, s38, 4096
    v_and_b32 v5, 7, v1
    v_lshlrev_b32 v5, 4, v5""")
    l=spin_begin(g,"ml")
    g("buffer_load_dwordx4 v[8:11], v5, s[12:15], s39 offen sc1\ns_waitcnt vmcnt(0)")
    tagchk(g,[9,11],6); spin_end(g,l,o.get('sl_ml',2))
    g.ts(5)
    l=spin_begin(g,"pd")
    for n in range(8): g(f"buffer_load_dwordx4 {r(40+4*n,4)}, v4, s[12:15], s{38 if n<4 else 40} offen offset:{1024*(n&3)} sc1")
    g(f"""v_max_f32_dpp v12, v8, v8 quad_perm:[1,0,3,2] {DPPA}
    s_nop 1
    v_max_f32_dpp v12, v12, v12 quad_perm:[2,3,0,1] {DPPA}
    v_sub_f32 v12, v8, v12
    v_mul_f32 v12, s35, v12
    v_exp_f32 v12, v12
    s_nop 0
    v_mul_f32 v13, v12, v10
    s_nop 1
    v_add_f32_dpp v13, v13, v13 quad_perm:[1,0,3,2] {DPPA}
    s_nop 1
    v_add_f32_dpp v13, v13, v13 quad_perm:[2,3,0,1] {DPPA}
    v_rcp_f32 v13, v13
    s_nop 0
    v_mul_f32 v12, v12, v13
    s_nop 0""")
    for n in range(8): g(f"v_readlane_b32 s{48+n}, v12, {n}")
    g("s_waitcnt vmcnt(0)")
    tagchk(g,[41+2*k for k in range(16)],6); spin_end(g,l,0)
    for b in range(2):
        g(f"v_mul_f32 v{16+2*b}, s{48+4*b}, v{40+16*b}\nv_mul_f32 v{17+2*b}, s{48+4*b}, v{42+16*b}")
        for p in range(1,4): g(f"v_fmac_f32 v{16+2*b}, s{48+4*b+p}, v{40+16*b+4*p}\nv_fmac_f32 v{17+2*b}, s{48+4*b+p}, v{42+16*b+4*p}")
    g(f"""s_mul_i32 s38, s32, {2*AS}
    v_lshl_add_u32 v5, v1, 2, s38
    v_cvt_pk_bf16_f32 v16, v16, v17
    v_cvt_pk_bf16_f32 v18, v18, v19
    ds_write_b32 v5, v16 offset:{L_A}
    ds_write_b32 v5, v18 offset:{L_A+AS}
    s_waitcnt lgkmcnt(0)
    s_barrier
    L_send:""")
    g.ts(6); g.tsdump(1)
    g("s_endpgm")

XA, RW, BT, D0, BW = 8, 72, 104, 112, 136
import os
WF = os.environ.get("WF","nt")
def wq_setup(g, sr):
    srd(g, sr, 22, 448*8192)
    g(f"""s_lshr_b32 s73, s2, 5
    s_lshl_b32 s73, s73, 5
    s_and_b32 s38, s2, 7
    s_lshl_b32 s38, s38, 2
    s_add_u32 s73, s73, s38
    s_bfe_u32 s38, s2, 0x20003
    s_add_u32 s73, s73, s38
    s_lshl_b32 s38, s73, 5
    v_and_b32 v3, 1, v1
    v_lshl_add_u32 v3, v3, 4, s38
    v_lshrrev_b32 v2, 1, v1
    v_lshl_add_u32 v2, v2, 13, v3""")
def dma(g, sr, ns, lbase, off, base=None, fl=""):
    for n in ns:
        g(f"s_mov_b32 m0, {lbase+1024*n}")
        g(f"s_mov_b32 s40, {off(n)}" if base is None else f"s_add_u32 s40, s{base}, {off(n)}")
        g(f"buffer_load_dwordx4 v2, s[{sr}:{sr+3}], s40 offen {fl} lds")
def proj_mma(g, D, lbase):
    for s in range(14):
        for u in range(2): g(f"ds_read_b64_tr_b16 {r(BW+4*s+2*u,2)}, v64 offset:{lbase+1024*s+128*u}")
        if s==6 or s==13:
            g("s_waitcnt lgkmcnt(0)")
            for q in range(s-6,s+1): g(f"v_mfma_f32_16x16x32_bf16 {r(D,4)}, {r(XA+4*q,4)}, {r(BW+4*q,4)}, {'0' if q==0 else r(D,4)}")
def pairpack(g, D, o):
    g(f"""v_cndmask_b32 v{BT}, v{D}, v{D+2}, s[54:55]
    v_cndmask_b32 v{BT+1}, v{D+1}, v{D+3}, s[54:55]
    s_nop 1
    v_mov_b32_dpp v{BT+2}, v{BT} quad_perm:[1,0,3,2] {DPPA}
    v_mov_b32_dpp v{BT+3}, v{BT+1} quad_perm:[1,0,3,2] {DPPA}
    v_cndmask_b32 v{o+1}, v{BT+2}, v{BT+1}, s[56:57]
    v_cndmask_b32 v{o}, v{BT}, v{BT+3}, s[56:57]""")
def wslice_regs(g, lbase):
    for t in range(4):
        for c in range(4):
            for u in range(2): g(f"ds_read_b64_tr_b16 {r(BW+16*t+4*c+2*u,2)}, v65 offset:{lbase+4096*t+512*u+32*c}")
        g("s_waitcnt lgkmcnt(0)")
def wslice_mma_store(g, A, jobb):
    for t in range(4):
        for e in range(4): g(f"v_mfma_f32_16x16x32_bf16 {r(D0+4*e,4)}, {r(A+4*t,4)}, {r(BW+16*t+4*e,4)}, {'0' if t==0 else r(D0+4*e,4)}")
    for q in range(4): g(f"v_mov_b32 v{RW+4*q+1}, s33\nv_mov_b32 v{RW+4*q+3}, s33")
    for q in range(4):
        g(f"""v_cndmask_b32 v{RW+4*q}, v{D0+q}, v{D0+8+q}, s[54:55]
        v_cndmask_b32 v{RW+4*q+2}, v{D0+4+q}, v{D0+12+q}, s[54:55]
        s_add_u32 s40, s43, {q*28*jobb}
        buffer_store_dwordx4 {r(RW+4*q,4)}, v6, s[12:15], s40 offen sc1""")
def joboff(g, jobb):
    g(f"""v_and_b32 v6, 1, v5
    v_mul_u32_u24 v6, 112, v6
    v_and_b32 v7, 2, v5
    v_add_u32 v6, v6, v7
    v_lshrrev_b32 v7, 3, v4
    v_add_u32 v6, v6, v7
    v_mul_u32_u24 v6, {jobb}, v6
    v_and_b32 v7, 7, v4
    v_lshl_add_u32 v6, v7, 4, v6""")
def red8x2(g, v, t):
    g(f"s_nop 0\nv_add_f32_dpp v{v}, v{v}, v{v} row_ror:8 {DPPA}\nv_add_f32_dpp v{v+1}, v{v+1}, v{v+1} row_ror:8 {DPPA}")
    for sw in ("16","32"):
        g(f"""v_mov_b32 v{t}, v{v}
        v_mov_b32 v{t+1}, v{v+1}
        s_nop 0
        v_permlane{sw}_swap_b32 v{v}, v{t}
        v_permlane{sw}_swap_b32 v{v+1}, v{t+1}
        v_add_f32 v{v}, v{v}, v{t}
        v_add_f32 v{v+1}, v{v+1}, v{t+1}""")
def rbf2(g, v): g(f"v_cvt_pk_bf16_f32 v{v+1}, v{v}, v{v+1}\nv_lshlrev_b32 v{v}, 16, v{v+1}\nv_and_b32 v{v+1}, 0xffff0000, v{v+1}")
def div7(g, src): g(f"s_mul_i32 s39, s{src}, 9363\ns_lshr_b32 s39, s39, 16\ns_mul_i32 s40, s39, 7\ns_sub_u32 s38, s{src}, s40\ns_mul_i32 s42, s39, {128*896}\ns_lshl_b32 s40, s38, 7\ns_add_u32 s42, s42, s40")

def helper(g):
    o=g.o
    g("s_setprio 3")
    srd(g, 44, 16, 7168)
    X=PA
    g(f"""s_mul_i32 s38, s3, 1792
    v_lshl_add_u32 v{T0}, v1, 4, s38""")
    for k in range(8): g(f"v_mov_b32 v{X+k}, 0")
    g(f"""s_mov_b32 exec_hi, 0xffffff
    buffer_load_dwordx4 {r(X,4)}, v{T0}, s[44:47], 0 offen
    buffer_load_dwordx4 {r(X+4,4)}, v{T0}, s[44:47], 0 offen offset:896
    s_mov_b32 exec_hi, -1""")
    wq_setup(g, 4)
    g(f"s_lshl_b32 s38, s3, 10\ns_add_u32 m0, s38, {L_W0}\ns_lshl_b32 s38, s3, 18")
    for n in range(4):
        if n==3: g("s_cmp_ge_u32 s3, 2\ns_cbranch_scc1 L_wq3")
        g(f"buffer_load_dwordx4 v2, s[4:7], s38 offen {WF} lds\ns_add_u32 m0, m0, 4096\ns_add_u32 s38, s38, {128*8192}")
    g(f"""L_wq3:
    s_barrier
    s_mul_i32 s38, s3, {2*XNS}
    v_lshl_add_u32 v{T0+1}, v1, 4, s38""")
    g.ts(1)
    g(f"""v_and_b32 v4, 15, v1
    v_lshrrev_b32 v5, 4, v1
    s_mov_b32 s54, 0
    s_mov_b32 s55, -1
    s_mov_b32 s56, 0xaaaaaaaa
    s_mov_b32 s57, 0xaaaaaaaa
    v_lshlrev_b32 v64, 8, v5
    v_lshl_add_u32 v64, v4, 3, v64
    v_lshrrev_b32 v7, 2, v4
    v_lshlrev_b32 v65, 10, v5
    v_lshl_add_u32 v65, v7, 7, v65
    v_and_b32 v7, 3, v4
    v_lshl_add_u32 v65, v7, 3, v65
    v_and_b32 v7, 7, v4
    v_mul_u32_u24 v66, {XNS}, v7
    v_lshl_add_u32 v66, v5, 4, v66
    v_and_b32 v6, 1, v5
    v_lshlrev_b32 v6, 2, v6
    v_and_b32 v7, 2, v5
    v_add_u32 v6, v6, v7
    v_and_b32 v7, 1, v4
    v_add_u32 v67, v6, v7
    v_lshrrev_b32 v7, 1, v4
    v_lshlrev_b32 v68, 3, v7
    v_lshl_add_u32 v69, v67, 6, v68
    v_lshlrev_b32 v70, 4, v1
    s_lshl_b32 s38, s73, 9
    s_add_u32 s38, s38, {W_Q}
    s_bfe_u32 s39, s2, 0x30002
    s_lshl_b32 s39, s39, 14
    s_lshr_b32 s40, s2, 5
    s_lshl_b32 s40, s40, 6
    s_add_u32 s39, s39, s40
    s_add_u32 s39, s39, {W_Q}
    s_add_u32 s42, s39, 8192
    v_lshrrev_b32 v71, 2, v1
    v_lshlrev_b32 v71, 9, v71
    v_and_b32 v7, 3, v1
    v_lshl_add_u32 v71, v7, 4, v71
""")
    F=VQ; t=VQ+16
    def red64(v):
        for c in ("quad_perm:[1,0,3,2]","quad_perm:[2,3,0,1]","row_ror:4","row_ror:8"):
            g(f"s_nop 0\nv_add_f32_dpp v{v}, v{v}, v{v} {c} {DPPA}\nv_add_f32_dpp v{v+1}, v{v+1}, v{v+1} {c} {DPPA}")
        for sw in ("16","32"):
            g(f"""v_mov_b32 v{t+8}, v{v}
            v_mov_b32 v{t+9}, v{v+1}
            s_nop 0
            v_permlane{sw}_swap_b32 v{v}, v{t+8}
            v_permlane{sw}_swap_b32 v{v+1}, v{t+9}
            v_add_f32 v{v}, v{v}, v{t+8}
            v_add_f32 v{v+1}, v{v+1}, v{t+9}""")
        g(f"v_mul_f32 v{v}, {f2u(1/448):#x}, v{v}\nv_mul_f32 v{v+1}, {f2u(1/448):#x}, v{v+1}")
    def rb2(v): g(f"v_cvt_pk_bf16_f32 v{v+1}, v{v}, v{v+1}\nv_lshlrev_b32 v{v}, 16, v{v+1}\nv_and_b32 v{v+1}, 0xffff0000, v{v+1}")
    g(f"s_waitcnt vmcnt(3)")
    for n in range(8): g(f"v_lshlrev_b32 v{F+2*n}, 16, v{X+n}\nv_and_b32 v{F+2*n+1}, 0xffff0000, v{X+n}")
    g(f"v_add_f32 v{t}, v{F}, v{F+1}\nv_add_f32 v{t+1}, v{F+8}, v{F+9}")
    for k in range(2,8): g(f"v_add_f32 v{t}, v{t}, v{F+k}\nv_add_f32 v{t+1}, v{t+1}, v{F+8+k}")
    red64(t)
    g(f"v_mov_b32 v{t+2}, 0\nv_mov_b32 v{t+3}, 0\ns_mov_b32 exec_hi, 0xffffff")
    for k in range(16): g(f"v_sub_f32 v{t+4}, v{F+k}, v{t+(k>>3)}\nv_fmac_f32 v{t+2+(k>>3)}, v{t+4}, v{t+4}")
    g("s_mov_b32 exec_hi, -1\ns_nop 0")
    red64(t+2)
    rb2(t); rb2(t+2)
    g(f"v_add_f32 v{t+2}, {f2u(1e-5):#x}, v{t+2}\nv_add_f32 v{t+3}, {f2u(1e-5):#x}, v{t+3}"); rb2(t+2)
    g(f"v_sqrt_f32 v{t+2}, v{t+2}\nv_sqrt_f32 v{t+3}, v{t+3}\ns_nop 0"); rb2(t+2)
    g(f"v_rcp_f32 v{t+4}, v{t+2}\nv_rcp_f32 v{t+5}, v{t+3}")
    for k in range(16): g(f"v_sub_f32 v{F+k}, v{F+k}, v{t+(k>>3)}")
    for n in range(8): rb2(F+2*n)
    for k in range(16): g(f"v_mul_f32 v{t+6}, v{F+k}, v{t+4+(k>>3)}\nv_fma_f32 v{F+k}, -v{t+6}, v{t+2+(k>>3)}, v{F+k}\nv_fma_f32 v{F+k}, v{F+k}, v{t+4+(k>>3)}, v{t+6}")
    for n in range(8): g(f"v_cvt_pk_bf16_f32 v{X+n}, v{F+2*n}, v{F+2*n+1}")
    g(f"""s_mov_b32 exec_hi, 0xffffff
    ds_write_b128 v{T0+1}, {r(X,4)} offset:{L_XN}
    ds_write_b128 v{T0+1}, {r(X+4,4)} offset:{L_XN+XNS}
    s_mov_b32 exec_hi, -1
    s_waitcnt vmcnt(0)""")
    def bump(off): g(f"s_waitcnt vmcnt(0) lgkmcnt(0)\nv_mov_b32 v6, 0\nv_mov_b32 v7, 1\ns_mov_b64 exec, 1\nds_add_u32 v6, v7 offset:{L_CNT+off}\ns_mov_b64 exec, -1")
    def ldswait(off, cmp, val, sleep):
        l=g.lab("lw")
        g(f"v_mov_b32 v6, 0\n{l}:" + (f"\ns_sleep {sleep}" if sleep else "") + f"\nds_read_b32 v7, v6 offset:{L_CNT+off}\ns_waitcnt lgkmcnt(0)\nv_readfirstlane_b32 s40, v7\ns_cmp_{cmp}_u32 s40, {val}\ns_cbranch_scc1 {l}")
    bump(4)
    g("s_cmp_lg_u32 s3, 0\ns_cbranch_scc1 L_b1")
    ldswait(4, "lt", 4, 0)
    g.ts(2)
    for s in range(14): g(f"ds_read_b128 {r(XA+4*s,4)}, v66 offset:{L_XN+64*s}")
    proj_mma(g, D0, L_W0)
    g(f"v_mov_b32 v{RW+1}, s33\ns_nop 6")
    pairpack(g, D0, D0+4)
    g(f"v_cvt_pk_bf16_f32 v{RW}, v{D0+4}, v{D0+5}\nbuffer_store_dwordx2 {r(RW,2)}, v69, s[12:15], s38 offen sc1")
    g.ts(3)
    if o.get('pp'):
        def qp(k): g(f"buffer_load_dwordx4 {r(BW+8*k,4)}, v71, s[12:15], s39 offen sc1\nbuffer_load_dwordx4 {r(BW+8*k+4,4)}, v71, s[12:15], s42 offen sc1\ns_sleep {o['pp']}")
        NP=4
        for k in range(NP-1): qp(k)
        g(f"s_mov_b32 s41, {SPIN}\nL_qp:")
        for k in range(NP):
            qp((k+NP-1)%NP)
            g(f"s_waitcnt vmcnt({2*NP-2})")
            for x in range(8): g(f"v_mov_b32 v{RW+4+x}, v{BW+8*k+x}")
            tagchk(g,[RW+5,RW+7,RW+9,RW+11],BT); g("s_cbranch_vccz L_qok")
        g("s_sub_u32 s41, s41, 1\ns_cmp_lg_u32 s41, 0\ns_cbranch_scc1 L_qp\nL_qok:")
    else:
        l=spin_begin(g,"q")
        g(f"buffer_load_dwordx4 {r(RW+4,4)}, v71, s[12:15], s39 offen sc1\nbuffer_load_dwordx4 {r(RW+8,4)}, v71, s[12:15], s42 offen sc1\ns_waitcnt vmcnt(0)")
        tagchk(g,[RW+5,RW+7,RW+9,RW+11],BT); spin_end(g,l,0)
    g(f"""v_lshlrev_b32 v6, 3, v1
    v_add_u32 v6, {L_Q}, v6
    ds_write2_b32 v6, v{RW+4}, v{RW+6} offset0:0 offset1:1
    ds_write2_b32 v6, v{RW+8}, v{RW+10} offset0:128 offset1:129
    s_waitcnt lgkmcnt(0)
    L_b1:
    s_barrier""")
    g.ts(4)
    if o.get('noside'): g("s_branch L_hend")
    g("s_cmp_ge_u32 s2, 224\ns_cbranch_scc1 L_nowo")
    div7(g, 2)
    g(f"""v_lshrrev_b32 v2, 4, v1
    v_bfe_u32 v7, v1, 3, 1
    v_lshl_add_u32 v2, v2, 3, v7
    v_mul_u32_u24 v2, 896, v2
    v_and_b32 v7, 7, v1
    v_lshl_add_u32 v2, v7, 4, v2""")
    srd(g, 8, 24, 4096*896)
    g(f"s_mul_i32 s40, s3, {2*896}\ns_add_u32 s42, s42, s40\ns_lshl_b32 s40, s3, 12\ns_add_u32 m0, s40, {L_W1}\ns_nop 0")
    for n in range(4): g(f"buffer_load_dwordx4 v2, s[8:11], s42 offen nt lds\ns_add_u32 m0, m0, 1024\ns_add_u32 s42, s42, {32*896}")
    g("L_nowo:")
    if o.get('noj23'): g("s_mov_b32 s58, 99")
    elif o.get('claim'):
        g("s_cmp_lg_u32 s3, 0\ns_cbranch_scc1 L_getjob")
        srd(g, 60, 68, 256)
        ldswait(0, "lt", o['claim'], 16)
        g(f"""v_mov_b32 v7, 1
        s_mov_b64 exec, 1
        buffer_atomic_add v7, v6, s[60:63], 0 offen sc0 sc1
        s_waitcnt vmcnt(0)
        v_add_u32 v7, 1, v7
        ds_write_b32 v6, v7 offset:{L_CNT+8}
        s_mov_b64 exec, -1
        L_getjob:""")
        ldswait(8, "eq", 0, 16)
        g("s_sub_u32 s58, s40, 1")
    else:
        g("s_and_b32 s40, s2, 3\ns_bfe_u32 s58, s2, 0x20003\ns_cmp_lg_u32 s40, s58\ns_cselect_b32 s40, 99, 0\ns_lshr_b32 s58, s2, 2\ns_add_u32 s58, s58, s40")
    g(f"""s_cmp_ge_u32 s58, 42
    s_cbranch_scc1 L_nojob
    s_lshl_b32 s59, s58, 7
    s_add_u32 s59, s59, {W_F}
    s_cmp_ge_u32 s58, 28
    s_cbranch_scc1 L_j3
    v_lshrrev_b32 v2, 3, v1
    v_mul_u32_u24 v2, 3584, v2
    v_and_b32 v7, 7, v1
    v_lshl_add_u32 v2, v7, 4, v2
    s_lshl_b32 s42, s58, 7""")
    def join():
        bump(12)
        g("s_cmp_lg_u32 s3, 0\ns_cbranch_scc1 L_exit")
        ldswait(12, "lt", 4, 4)
    def wpass(D, first):
        g("s_waitcnt vmcnt(0)")
        for t in range(14):
            B=BW+16*(t&1)
            for c in range(4):
                for u in range(2): g(f"ds_read_b64_tr_b16 {r(B+4*c+2*u,2)}, v71 offset:{4096*t+512*u+32*c}")
            g("s_waitcnt lgkmcnt(0)")
            for c in range(4): g(f"v_mfma_f32_16x16x32_bf16 {r(D+4*c,4)}, {r(XA+4*t,4)}, {r(B+4*c,4)}, {'0' if (t==0 and first) else r(D+4*c,4)}")
    def dmaloop(sr, lb, n_out, step_out, step_in):
        l=g.lab("dma")
        g(f"s_lshl_b32 s40, s3, 11\ns_add_u32 m0, s40, {lb}\ns_mul_i32 s40, s3, {2*step_in}\ns_add_u32 s40, s40, s42\ns_mov_b32 s41, {n_out}\n{l}:")
        g(f"""buffer_load_dwordx4 v2, s[{sr}:{sr+3}], s40 offen nt lds
        s_add_u32 m0, m0, 1024
        s_add_u32 s40, s40, {step_in}
        buffer_load_dwordx4 v2, s[{sr}:{sr+3}], s40 offen nt lds
        s_add_u32 m0, m0, 7168
        s_add_u32 s40, s40, {step_out-step_in}
        s_sub_u32 s41, s41, 1
        s_cmp_lg_u32 s41, 0
        s_cbranch_scc1 {l}""")
    D1=BW+32
    srd(g, 4, 28, 448*3584); srd(g, 44, 30, 448*3584)
    dmaloop(4, L_W0, 7, 64*3584, 8*3584); dmaloop(44, L_W0+57344, 7, 64*3584, 8*3584); join()
    g(f"v_add_u32 v71, {L_W0}, v65"); wpass(D0, True)
    g(f"v_add_u32 v71, {L_W0+57344}, v65"); wpass(D1, True)
    g("s_nop 7")
    for c in range(4):
        pairpack(g, D0+4*c, RW+4); pairpack(g, D1+4*c, RW+6); rbf2(g, RW+4); rbf2(g, RW+6)
        g(f"v_mul_f32 v{RW+4}, v{RW+4}, v{RW+6}\nv_mul_f32 v{RW+5}, v{RW+5}, v{RW+7}\nv_cvt_pk_bf16_f32 v{RW+c}, v{RW+4}, v{RW+5}")
    g(f"""v_mul_u32_u24 v69, 3584, v67
    v_lshl_add_u32 v69, v68, 1, v69
    s_lshl_b32 s38, s58, 7
    s_add_u32 s38, s38, {W_H}
    buffer_store_dwordx4 {r(RW,4)}, v69, s[12:15], s38 offen sc1
    s_branch L_flag
    L_j3:
    s_sub_u32 s38, s58, 28
    s_cmp_ge_u32 s38, 7
    s_cselect_b32 s39, 1, 0          ; K half
    s_mul_i32 s40, s39, 7
    s_sub_u32 s40, s38, s40          ; ns
    s_lshl_b32 s40, s40, 7
    s_mul_i32 s42, s39, {896*896}
    s_add_u32 s42, s42, s40
    v_lshrrev_b32 v2, 4, v1
    v_bfe_u32 v7, v1, 3, 1
    v_lshl_add_u32 v2, v2, 4, v7
    v_mul_u32_u24 v2, 896, v2
    v_and_b32 v7, 7, v1
    v_lshl_add_u32 v2, v7, 4, v2
    v_mul_u32_u24 v69, 3584, v7
    v_lshl_add_u32 v69, v5, 4, v69
    v_add_u32 v71, {L_W0}, v65
    s_mul_i32 s43, s39, 1792
    s_add_u32 s52, s43, {W_F}
    s_add_u32 s43, s43, {W_H}
""")
    srd(g, 4, 64, 1792*896); dmaloop(4, L_W0, 14, 64*896, 2*896); join()
    g("v_min_u32 v6, 13, v1\nv_lshlrev_b32 v6, 7, v6")
    l=spin_begin(g,"hf")
    g(f"buffer_load_dword v{RW}, v6, s[12:15], s52 offen sc1\ns_waitcnt vmcnt(0)")
    tagchk(g,[RW],BT); spin_end(g,l,64)
    for t in range(14): g(f"buffer_load_dwordx4 {r(XA+4*t,4)}, v69, s[12:15], s43 offen offset:{64*t} sc1")
    wpass(D0, True)
    g(f"v_add_u32 v71, {L_W0+57344}, v65\ns_nop 7")
    for t in range(14): g(f"buffer_load_dwordx4 {r(XA+4*t,4)}, v69, s[12:15], s43 offen offset:{896+64*t} sc1")
    wpass(D0, False)
    g(f"""v_and_b32 v6, 1, v5
    v_lshlrev_b32 v6, 2, v6
    v_and_b32 v7, 2, v5
    v_add_u32 v6, v6, v7
    v_lshlrev_b32 v6, 8, v6
    v_lshl_add_u32 v6, v4, 4, v6
    s_lshl_b32 s38, s38, 11
    s_add_u32 s38, s38, {W_Y}""")
    for q in range(2):
        for c in range(4): g(f"v_cndmask_b32 v{RW+4*q+c}, v{D0+4*c+q}, v{D0+4*c+2+q}, s[54:55]")
        g(f"buffer_store_dwordx4 {r(RW+4*q,4)}, v6, s[12:15], s38 offen offset:{256*q} sc1")
    g(f"""L_flag:
    s_waitcnt vmcnt(0)
    v_mov_b32 v6, s33
    s_mov_b64 exec, 1
    buffer_store_dword v6, v70, s[12:15], s59 offen sc1
    s_mov_b64 exec, -1
    s_branch L_noj3
    L_nojob:""")
    join()
    g(f"""L_noj3:
    s_cmp_ge_u32 s2, 224
    s_cbranch_scc1 L_hend""")
    div7(g, 2)
    g("v_and_b32 v7, 7, v1")
    g(f"""s_lshl_b32 s43, s38, 14
    s_lshl_b32 s40, s39, 7
    s_add_u32 s43, s43, s40
    s_add_u32 s43, s43, {W_S}
    s_lshr_b32 s38, s2, 1
    s_lshl_b32 s38, s38, 6
    s_and_b32 s40, s2, 1
    s_lshl_b32 s40, s40, 4
    s_add_u32 s38, s38, s40
    v_lshl_add_u32 v36, v7, 1, s38""")
    srd(g, 44, 16, 7168); srd(g, 48, 66, 7168)
    g(f"buffer_load_ushort v34, v36, s[44:47], 0 offen\nbuffer_load_ushort v35, v36, s[44:47], 0 offen offset:32\ns_waitcnt vmcnt(0)")
    wslice_regs(g, L_W1); joboff(g, 4096)
    g(f"""v_lshlrev_b32 v34, 16, v34
    v_lshlrev_b32 v35, 16, v35
    v_mul_u32_u24 v38, {AS}, v7
    v_lshl_add_u32 v38, v5, 4, v38
    s_mul_i32 s38, s2, 2341
    s_lshr_b32 s38, s38, 16          ; b = w/28
    s_mul_i32 s39, s38, 28
    s_sub_u32 s39, s2, s39
    s_lshr_b32 s40, s39, 2           ; ns
    s_lshl_b32 s52, s40, 7
    s_add_u32 s52, s52, {W_F+28*128}
    s_lshl_b32 s40, s40, 11
    s_lshl_b32 s38, s38, 8
    s_add_u32 s38, s38, s40
    s_and_b32 s40, s39, 1
    s_lshl_b32 s40, s40, 7
    s_add_u32 s38, s38, s40
    s_and_b32 s40, s39, 2
    s_lshl_b32 s40, s40, 2
    s_add_u32 s38, s38, s40
    s_add_u32 s38, s38, {W_Y}
    v_bfe_u32 v39, v1, 3, 1
    v_mul_u32_u24 v37, 896, v39
    v_mul_u32_u24 v39, 14336, v39
    v_lshl_add_u32 v39, v7, 4, v39""")
    g.ts(5)
    if o.get('notail'): g("s_branch L_hend")
    g("s_barrier")
    l=spin_begin(g,"y")
    g(f"buffer_load_dword v{RW}, v37, s[12:15], s52 offen sc1\ns_waitcnt vmcnt(0)")
    tagchk(g,[RW],BT)
    if o.get('noj23'): g("s_mov_b64 vcc, 0")
    spin_end(g,l,8)
    g(f"""buffer_load_dwordx2 v[32:33], v39, s[12:15], s38 offen sc1
    s_waitcnt vmcnt(0)
    v_add_f32_dpp v32, v32, v32 row_ror:8 {DPPA}
    v_add_f32_dpp v33, v33, v33 row_ror:8 {DPPA}""")
    rbf2(g,32)
    for v in (32,33):
        g(f"""v_mul_f32 v{BT}, {f2u(-1.4426950408889634):#x}, v{v}
        v_exp_f32 v{BT}, v{BT}
        s_nop 0
        v_add_f32 v{BT}, 1.0, v{BT}
        v_rcp_f32 v{BT}, v{BT}
        s_nop 0
        v_mul_f32 v{v}, v{v}, v{BT}""")
    rbf2(g,32)
    g(f"s_lshl_b32 s38, s2, 12\ns_add_u32 s38, s38, {W_S}\ns_barrier")
    for t in range(4): g(f"ds_read_b128 {r(XA+4*t,4)}, v38 offset:{L_A+64*t}")
    g("s_waitcnt lgkmcnt(0)")
    wslice_mma_store(g, XA, 4096)
    g.ts(6)
    R2=RW+16
    l=spin_begin(g,"s")
    for n in range(4): g(f"buffer_load_dwordx4 {r(R2+4*n,4)}, v70, s[12:15], s38 offen offset:{1024*n} sc1")
    g("s_waitcnt vmcnt(0)")
    tagchk(g,[R2+1+2*k for k in range(8)],BT); spin_end(g,l,o.get('sl_s',1))
    g(f"""v_add_f32 v{R2}, v{R2}, v{R2+4}
    v_add_f32 v{R2+2}, v{R2+2}, v{R2+6}
    v_add_f32 v{R2+8}, v{R2+8}, v{R2+12}
    v_add_f32 v{R2+10}, v{R2+10}, v{R2+14}
    v_add_f32 v30, v{R2}, v{R2+8}
    v_add_f32 v31, v{R2+2}, v{R2+10}""")
    red8x2(g,30,BT); rbf2(g,30)
    g("v_mul_f32 v30, v30, v32\nv_mul_f32 v31, v31, v33"); rbf2(g,30)
    g(f"""v_add_f32 v30, v30, v34
    v_add_f32 v31, v31, v35
    v_cvt_pk_bf16_f32 v31, v30, v31
    s_mov_b64 exec, 0xff
    buffer_store_short v31, v36, s[48:51], 0 offen
    buffer_store_short_d16_hi v31, v36, s[48:51], 0 offen offset:32
    s_cmp_lg_u32 s2, 0
    s_cbranch_scc1 L_hend
    s_mov_b64 exec, 1
    v_mov_b32 v30, s33
    buffer_store_dword v30, v70, s[12:15], 0 offen sc1
    L_hend:""")
    g.ts(7); g.tsdump()
    g("s_endpgm")

def build(opt):
    g=G(opt)
    hdr=open("cdna_kernels/"+NAME+".s.ref").read().split("; Override launch")[0]
    g.L.append(hdr+f"; @launch grid=(256,1,1) block=(512,1,1) lds={LDS}")
    g.L.append(f'.amdgcn_target "amdgcn-amd-amdhsa--gfx950"\n.text\n.globl {NAME}_kernel\n.p2align 8\n.type {NAME}_kernel,@function\n{NAME}_kernel:')
    g.ts(0)
    g(f"""s_cmp_ge_u32 s2, 256
    s_cbranch_scc1 L_exit
    s_load_dwordx16 s[16:31], s[0:1], 0
    s_load_dwordx8 s[64:71], s[0:1], 64
    v_lshrrev_b32 v2, 6, v0
    v_and_b32 v1, 63, v0
    v_mov_b32 v6, 0
    v_mov_b32 v8, 0
    v_mov_b32 v9, 0
    v_mov_b32 v10, 0
    v_mov_b32 v11, 0
    ds_write_b128 v6, v[8:11] offset:{L_CNT}
    v_readfirstlane_b32 s3, v2
    s_waitcnt lgkmcnt(0)
    s_load_dword s72, s[70:71], 0""")
    srd(g, 12, 70, W_END)
    g("s_cmp_lt_u32 s3, 4\ns_cbranch_scc1 L_helper")
    mark=len(g.L); stream(g)
    g("L_helper:"); mark2=len(g.L); helper(g)
    for m in (mark2, mark):
        k=next(i for i in range(m,len(g.L)) if g.L[i].strip()=="s_waitcnt lgkmcnt(0)")
        g.L.insert(k+1,"  s_add_u32 s33, s72, 0x9e3779b9")
    g("L_exit:\ns_endpgm")
    g.L.append(f""".section .rodata,"a"
.p2align 6
.amdhsa_kernel {NAME}_kernel
  .amdhsa_next_free_vgpr 224
  .amdhsa_next_free_sgpr 102
  .amdhsa_accum_offset 224
  .amdhsa_group_segment_fixed_size 0
  .amdhsa_kernarg_size 96
  .amdhsa_user_sgpr_count 2
  .amdhsa_user_sgpr_kernarg_segment_ptr 1
  .amdhsa_system_sgpr_workgroup_id_x 1
.end_amdhsa_kernel""")
    return "\n".join(g.L)+"\n"

if __name__=="__main__":
    opt=eval(sys.argv[2]) if len(sys.argv)>2 else {}
    open(sys.argv[1],"w").write(build(opt))
```

```python
import sys, struct
NAME = "recurrent_scan__gqa_block_cached__glu_gated_bilinear__decode"
def f2u(x): return struct.unpack('<I', struct.pack('<f', x))[0]
CSC = f2u(0.0625*1.4426950408889634)
W_Q, W_H, W_Y, W_S, W_P, W_ML, W_TS, W_END = 0x1000, 0x21000, 0x30000, 0xA0000, 0x180000, 0x280000, 0x290000, 0x300000
L_XN, XNS = 0, 912
L_Q = 7424
L_O = 8448
L_ML = 16640
L_A, AS = 16704, 272
L_CNT = 18944
L_W0, L_W1 = 35840, 19456
LDS = 35840+114688
W_F = 0x28000
DPPA = "row_mask:0xf bank_mask:0xf"
SPIN = 20000

class G:
    def __init__(s, opt): s.L=[]; s.o=opt; s.n=0
    def __call__(s, t):
        for ln in t.split("\n"):
            ln=ln.strip()
            if ln: s.L.append(ln if ln.endswith(":") else "  "+ln)
    def lab(s, p): s.n+=1; return f"L_{p}_{s.n}"
    def ts(s, k):
        if s.o.get('ts'): s(f"s_memrealtime s[{80+2*k}:{81+2*k}]")
    def tsdump(s, role=0):
        if not s.o.get('ts'): return
        if s.o.get('ts')==3:
            srd(s, 60, 68, 256)
            s(f"s_waitcnt lgkmcnt(0)\ns_mov_b64 exec, 1\nv_mov_b32 v7, 0\ns_cmp_lg_u32 s2, 5\ns_cbranch_scc1 L_exit\ns_cmp_lg_u32 s3, {4*role}\ns_cbranch_scc1 L_exit")
            for k in range(1,8): s(f"s_sub_u32 s40, s{80+2*k}, s80\nv_mov_b32 v{8+k}, s40\nbuffer_store_dword v{8+k}, v7, s[60:63], 0 offen offset:{4*k+32*role}")
            return
        if s.o.get('ts')==2:
            srd(s, 60, 68, 256)
            s("s_waitcnt lgkmcnt(0)\ns_mov_b64 exec, 1\nv_mov_b32 v7, 0\ns_cmp_ge_u32 s2, 224\ns_cbranch_scc1 L_exit")
            items=[(1,0,1),(2,2,0),(3,7,1),(4,7,0),(5,3,1),(6,3,0),(7,0,0)] if role else [(8,2,0),(9,3,0),(10,5,0),(11,6,0),(12,7,0)]
            for w,k,inv in items:
                s(f"v_{'not' if inv else 'mov'}_b32 v{8+w}, s{80+2*k}\nbuffer_atomic_umax v{8+w}, v7, s[60:63], 0 offen offset:{4*w} sc1")
            return
        s("s_waitcnt lgkmcnt(0)\ns_mov_b64 exec, 1")
        for k in range(8): s(f"v_mov_b32 v{8+k}, s{80+2*k}")
        s(f"s_mul_i32 s40, s2, 8\ns_add_u32 s40, s40, s3\ns_lshl_b32 s40, s40, 5\ns_add_u32 s40, s40, {W_TS}\nv_mov_b32 v7, 0")
        s("buffer_store_dwordx4 v[8:11], v7, s[12:15], s40 offen\nbuffer_store_dwordx4 v[12:15], v7, s[12:15], s40 offen offset:16")

def r(b, n): return f"v[{b}:{b+n-1}]"

def red_g(g, op, v, t):
    g(f"""v_mov_b32 v{t}, v{v}
    s_nop 1
    v_permlane32_swap_b32 v{v}, v{t}
    s_nop 0
    {op} v{v}, v{v}, v{t}
    v_mov_b32 v{t}, v{v}
    s_nop 1
    v_permlane16_swap_b32 v{v}, v{t}
    s_nop 0
    {op} v{v}, v{v}, v{t}""")

def spin_begin(g, p):
    l=g.lab(p); g(f"s_mov_b32 s41, {SPIN}\n{l}:"); return l
def spin_end(g, l, sleep):
    d=g.lab("dn")
    g(f"""s_cbranch_vccz {d}
    s_sub_u32 s41, s41, 1
    s_cmp_eq_u32 s41, 0
    s_cbranch_scc1 {d}
    s_sleep {sleep}
    s_branch {l}
    {d}:""")
def tagchk(g, regs, t):
    g(f"v_xor_b32 v{t}, s33, v{regs[0]}")
    for x in regs[1:]: g(f"v_xor_b32 v{t+1}, s33, v{x}\nv_or_b32 v{t}, v{t}, v{t+1}")
    g(f"v_cmp_ne_u32 vcc, 0, v{t}\ns_nop 4")

def srd(g, d, p, size): g(f"s_mov_b32 s{d}, s{p}\ns_mov_b32 s{d+1}, s{p+1}\ns_mov_b32 s{d+2}, {size}\ns_mov_b32 s{d+3}, 0x20000")

VK, VV, VQ, KB, S0, ACC, VM, VL, T0, PA, PB = 2, 3, 8, 40, 168, 172, 180, 181, 182, 192, 208
VKA, VVA, VONE, VIDX, VQ4, VK4 = 190, 191, 6, 7, 216, 189
def setaddr(g, s): g(f"s_lshl_b32 s34, s{74+s}, 13\nv_add_u32 v{VKA}, s34, v{VK4 if g.lf=='q' else VK}\nv_add_u32 v{VVA}, s34, v{VV}")
def kbuf(s): return KB+64*s
def vbuf(s): return KB+64*s+32
def ldK(g, s, js=range(8)):
    for j in js: g(f"buffer_load_dwordx4 {r(kbuf(s)+4*j,4)}, v{VKA}, s[4:7], 0 offen offset:{(256 if g.lf=='q' else 64)*j} nt")
def ldV(g, s, js=range(8)):
    for j in js: g(f"buffer_load_dwordx4 {r(vbuf(s)+4*j,4)}, v{VVA}, s[8:11], 0 offen offset:{256*j} nt")
def step(g, s, wk, wv, refill):
    n0=len(g.L); step_(g, s, wk, wv, refill)
    if g.o.get('nocomp'):
        g.L[n0:]=[x for x in g.L[n0:] if not (x.strip().startswith('v_') and not any(k in x for k in ('readfirstlane','s34')))]
    if g.o.get('static'):
        g.L[n0:]=[(f"  s_add_u32 s{74+s}, s{74+s}, {g.inc}" if 'readfirstlane' in x else x) for x in g.L[n0:]]
        g.L[n0:]=[x.replace(f'ds_add_rtn_u32 v{VIDX}, ','ds_add_u32 ') for x in g.L[n0:] if 'lgkmcnt' not in x]
def step_(g, s, wk, wv, refill):
    g(f"s_cmp_ge_u32 s{74+s}, 128\ns_cbranch_scc1 L_done")
    if refill:
        g(f"s_mov_b64 exec, 1\nds_add_rtn_u32 v{VIDX}, v4, v{VONE} offset:{L_CNT}\ns_mov_b64 exec, -1")
    W=g.o.get('win',16); A,Bq=range(4),range(4,8)
    win = W if wk is None else 0
    if win==8: g("s_waitcnt vmcnt(4)"); ldV(g,s,A); g("s_waitcnt vmcnt(4)"); ldV(g,s,Bq)
    elif win==12: g("s_waitcnt vmcnt(8)"); ldV(g,s,Bq); g("s_waitcnt vmcnt(8)")
    elif win==10: g("s_waitcnt vmcnt(7)"); ldV(g,s,range(2,5)); g("s_waitcnt vmcnt(7)"); ldV(g,s,range(5,8)); g("s_waitcnt vmcnt(8)")
    else: g(f"s_waitcnt vmcnt({8 if win else wk})")
    if g.cf=='q':
        for hf in range(2):
            for tt in range(4): g(f"v_mfma_f32_16x16x32_bf16 {r(PA+4*tt,4)}, {r(kbuf(s)+4*(2*tt+hf),4)}, {r(VQ4+4*hf,4)}, {'0' if hf==0 else r(PA+4*tt,4)}")
    else:
        for j in range(8): g(f"v_mfma_f32_16x16x32_bf16 {r(S0,4)}, {r(kbuf(s)+4*j,4)}, {r(VQ+4*j,4)}, {'0' if j==0 else r(S0,4)}")
    if refill:
        g(f"s_waitcnt lgkmcnt(0)\nv_readfirstlane_b32 s{74+s}, v{VIDX}"); setaddr(g, s); ldK(g, s, {8:[],10:range(2),12:A}.get(win,range(8)))
    g("s_nop 7")
    t=T0
    if g.cf=='q':
        for tt in range(4): g(f"v_cndmask_b32 v{PA+4*tt}, v{PA+4*tt}, v{PA+4*tt+1}, s[44:45]\nv_cndmask_b32 v{PA+4*tt+2}, v{PA+4*tt+2}, v{PA+4*tt+3}, s[44:45]")
        for tt in range(4): g(f"v_cndmask_b32 v{S0+tt}, v{PA+4*tt}, v{PA+4*tt+2}, s[46:47]")
        for c in (4,8):
            for tt in range(4): g(f"v_add_f32_dpp v{S0+tt}, v{S0+tt}, v{S0+tt} row_ror:{c} {DPPA}")
    g(f"""v_cvt_pk_bf16_f32 v{t}, v{S0}, v{S0+1}
    v_cvt_pk_bf16_f32 v{t+1}, v{S0+2}, v{S0+3}
    v_lshlrev_b32 v{S0}, 16, v{t}
    v_and_b32 v{S0+1}, 0xffff0000, v{t}
    v_lshlrev_b32 v{S0+2}, 16, v{t+1}
    v_and_b32 v{S0+3}, 0xffff0000, v{t+1}
    v_max3_f32 v{t}, v{S0}, v{S0+1}, v{S0+2}
    v_max3_f32 v{t}, v{t}, v{S0+3}, v{VM}""")
    red_g(g, "v_max_f32", t, t+1)
    g(f"""v_sub_f32 v{t+1}, v{VM}, v{t}
    v_mul_f32 v{t+2}, s35, v{t}
    v_mul_f32 v{t+1}, s35, v{t+1}
    v_mov_b32 v{VM}, v{t}
    v_exp_f32 v{t+1}, v{t+1}""")
    for k in range(4): g(f"v_fma_f32 v{S0+k}, v{S0+k}, s35, -v{t+2}")
    for k in range(4): g(f"v_exp_f32 v{S0+k}, v{S0+k}")
    for k in range(8): g(f"v_mul_f32_dpp v{ACC+k}, v{t+1}, v{ACC+k} quad_perm:[{','.join([str(k&2)]*4)}] {DPPA}")
    g(f"""v_cvt_pk_bf16_f32 v{t+2}, v{S0}, v{S0+1}
    v_cvt_pk_bf16_f32 v{t+3}, v{S0+2}, v{S0+3}
    v_fma_f32 v{VL}, v{VL}, v{t+1}, v{S0}
    v_add_f32 v{S0+1}, v{S0+1}, v{S0+2}
    v_add_f32 v{VL}, v{VL}, v{S0+3}
    v_add_f32 v{VL}, v{VL}, v{S0+1}""")
    for e in range(8): g(f"v_cndmask_b32 v{PA+2*e}, 0, v{t+2}, s[{48+2*e}:{49+2*e}]\nv_cndmask_b32 v{PA+2*e+1}, 0, v{t+3}, s[{48+2*e}:{49+2*e}]")
    if win==8: g("s_waitcnt vmcnt(4)"); ldK(g,s,A); g("s_waitcnt vmcnt(4)"); ldK(g,s,Bq)
    elif win==12: g("s_waitcnt vmcnt(8)"); ldK(g,s,Bq); g("s_waitcnt vmcnt(8)")
    elif win==10: g("s_waitcnt vmcnt(7)"); ldK(g,s,range(2,5)); g("s_waitcnt vmcnt(7)"); ldK(g,s,range(5,8)); g("s_waitcnt vmcnt(8)")
    else: g(f"s_waitcnt vmcnt({8 if win else wv})")
    V=vbuf(s)
    def vreg(j,a,d): return V+4*(2*j+a)+d
    def perm(n):
        a,e=n>>3,n&7; b=PB+2*(n&3); sel=36+(e&1)
        g(f"v_perm_b32 v{b}, v{vreg(1,a,e>>1)}, v{vreg(0,a,e>>1)}, s{sel}\nv_perm_b32 v{b+1}, v{vreg(3,a,e>>1)}, v{vreg(2,a,e>>1)}, s{sel}")
    perm(0); perm(1)
    for n in range(16):
        if n+2<16: perm(n+2)
        a,e=n>>3,n&7
        g(f"v_mfma_f32_16x16x16_bf16 {r(ACC+4*a,4)}, {r(PA+2*e,2)}, {r(PB+2*(n&3),2)}, {r(ACC+4*a,4)}")
    if refill:
        ldV(g, s, range(W-8))

def stream(g):
    o=g.o
    g(f"""s_sub_u32 s32, s3, 4
    s_lshl_b32 s4, s2, 20
    s_add_u32 s8, s20, s4
    s_addc_u32 s9, s21, 0
    s_add_u32 s4, s18, s4
    s_addc_u32 s5, s19, 0
    s_mov_b32 s6, 0x100000
    s_mov_b32 s7, 0x20000
    s_mov_b32 s10, 0x100000
    s_mov_b32 s11, 0x20000""")
    g(f"""v_and_b32 v4, 15, v1
    v_lshrrev_b32 v5, 4, v1
    v_lshlrev_b32 v{VK}, 9, v4
    v_lshl_add_u32 v{VK}, v5, 4, v{VK}
    v_lshlrev_b32 v{VV}, 11, v5
    v_lshl_add_u32 v{VV}, v4, 4, v{VV}
    s_mov_b32 s74, s32
    s_add_u32 s75, s32, 4""")
    PAT=o.get('pat','r'*32); assert len(PAT)==32; PAT+=PAT[-1]
    g(f"v_lshrrev_b32 v6, 2, v4\nv_lshlrev_b32 v{VK4}, 11, v6\nv_lshl_add_u32 v{VK4}, v5, 6, v{VK4}\nv_and_b32 v6, 3, v4\nv_lshl_add_u32 v{VK4}, v6, 4, v{VK4}")
    NPRE=o.get('npre',4)
    pre=[lambda:(setaddr(g,0),ldK(g,0)), lambda:ldV(g,0), lambda:(setaddr(g,1),ldK(g,1)), lambda:ldV(g,1)]
    g("s_barrier")
    for k,f in enumerate(pre): g.lf=PAT[k>>1]; f()
    g.lf=PAT[2]
    NL=o.get('nl',0)
    if NL:
        assert o.get('claim') or o.get('noj23')
        g(f"s_add_u32 s76, s32, 8\ns_lshl_b32 s38, s32, 14\ns_add_u32 s38, s38, {L_W0+16384}\ns_mov_b32 m0, s38\nv_lshl_add_u32 v{T0+1}, v1, 4, s38"); setaddr(g,2)
        ks=256 if g.lf=='q' else 64
        for j in range(8): g(f"buffer_load_dwordx4 v{VKA}, s[4:7], 0 offen offset:{ks*j} nt lds\ns_add_u32 m0, m0, {1024-ks if j<7 else 1024+7*ks}\ns_nop 0")
        for j in range(8): g(f"buffer_load_dwordx4 v{VVA}, s[8:11], 0 offen offset:{256*j} nt lds\ns_add_u32 m0, m0, 768\ns_nop 0")
    g.ts(1)
    g(f"s_mov_b32 s35, {CSC}\ns_mov_b32 s36, 0x05040100\ns_mov_b32 s37, 0x07060302")
    for e in range(8):
        m=0
        for i in range(16):
            if (i&1)+2*(i>>2)==e: m|=1<<i
        m|=m<<16
        g(f"s_mov_b32 s{48+2*e}, {m:#x}\ns_mov_b32 s{49+2*e}, {m:#x}")
    g(f"v_mov_b32 v{VONE}, 1")
    for k in range(8): g(f"v_mov_b32 v{ACC+k}, 0")
    g(f"v_mov_b32 v{VM}, 0xff800000\nv_mov_b32 v{VL}, 0")
    g(f"""v_bfe_u32 v{T0}, v1, 1, 1
    v_lshlrev_b32 v{T0}, 9, v{T0}
    v_lshl_add_u32 v{T0+2}, v5, 6, v{T0}
    v_lshl_add_u32 v{T0}, v5, 4, v{T0}
    v_lshrrev_b32 v7, 2, v4
    v_lshl_add_u32 v{T0+2}, v7, 4, v{T0+2}
    s_mov_b32 s44, 0xf0f0f0f0
    s_mov_b32 s45, s44
    s_mov_b32 s46, 0xff00ff00
    s_mov_b32 s47, s46
    s_barrier""")
    g.ts(2)
    for j in range(2): g(f"ds_read_b128 {r(VQ4+4*j,4)}, v{T0+2} offset:{L_Q+256*j}")
    for j in range(8): g(f"ds_read_b128 {r(VQ+4*j,4)}, v{T0} offset:{L_Q+64*j}")
    g("s_waitcnt lgkmcnt(0)")
    assert NL and o.get('static')
    W=o.get('win',16)
    g(f"v_mov_b32 v{T0+6}, v{T0+1}")
    g.inc=12; g.cf,g.lf=PAT[0],PAT[3]; step(g,0,40,40,True)
    g.cf=PAT[1]; step(g,1,24+W,16+W,False)
    g(f"s_waitcnt vmcnt({W})")
    for j in range(16): g(f"ds_read_b128 {r(kbuf(1)+4*j,4)}, v{T0+6} offset:{1024*j}")
    g("s_waitcnt lgkmcnt(0)")
    g.cf=PAT[2]; step(g,1,W,W,False)
    g.inc=4
    per=o.get('per')
    seq=[(PAT[n],PAT[n+1]) for n in range(3,32)]
    if per: seq=seq[:per]; g("L_per:")
    n=0
    while n<len(seq):
        m=n
        while m<len(seq) and seq[m]==seq[n]: m+=1
        g.cf,g.lf=seq[n]
        if m-n>1:
            l=g.lab("run"); g(f"s_mov_b32 s38, {m-n}\n{l}:")
        step(g,0,None,None,True)
        if m-n>1: g(f"s_sub_u32 s38, s38, 1\ns_cmp_lg_u32 s38, 0\ns_cbranch_scc1 {l}")
        n=m
    if per: g("s_branch L_per")
    g("L_done:")
    g.ts(3)
    if o.get('noside') or o.get('notail'): g("s_branch L_send")
    red_g(g, "v_add_f32", VL, T0)
    g(f"""s_lshl_b32 s38, s32, 11
    v_lshl_add_u32 v{T0}, v1, 4, s38
    v_and_b32 v{T0+1}, 2, v1
    v_lshlrev_b32 v{T0+1}, 2, v{T0+1}
    v_lshl_add_u32 v{T0+1}, s32, 4, v{T0+1}
    ds_write_b128 v{T0}, {r(ACC,4)} offset:{L_O}
    ds_write_b128 v{T0}, {r(ACC+4,4)} offset:{L_O+1024}
    ds_write_b64 v{T0+1}, {r(VM,2)} offset:{L_ML}
    s_lshr_b32 s38, s32, 1
    s_and_b32 s39, s32, 1
    s_lshl_b32 s40, s38, 10
    s_lshl_b32 s42, s39, 3
    s_add_u32 s40, s40, s42
    v_lshl_add_u32 v{T0}, v1, 4, s40
    v_mov_b32 v{T0+1}, s42
    s_lshr_b32 s40, s2, 2
    s_and_b32 s40, s40, 7
    s_lshl_b32 s40, s40, 1
    s_add_u32 s40, s40, s39          ; hq
    s_lshr_b32 s42, s2, 5
    s_lshl_b32 s42, s42, 2
    s_and_b32 s43, s2, 3
    s_add_u32 s42, s42, s43          ; b*4+p
    s_lshl_b32 s43, s40, 5
    s_add_u32 s43, s43, s42
    s_lshl_b32 s43, s43, 4
    s_add_u32 s43, s43, {W_ML}
    s_lshl_b32 s40, s40, 1
    s_add_u32 s40, s40, s38
    s_lshl_b32 s40, s40, 5
    s_add_u32 s40, s40, s42
    s_lshl_b32 s40, s40, 10
    s_add_u32 s40, s40, {W_P}        ; P slot
    v_lshlrev_b32 v4, 4, v1
    s_waitcnt lgkmcnt(0)
    s_barrier""")
    for w in range(4): g(f"ds_read_b64 {r(8+2*w,2)}, v{T0+1} offset:{L_ML+16*w}")
    for w in range(4): g(f"ds_read_b64 {r(16+2*w,2)}, v{T0} offset:{L_O+2048*w}")
    g("s_waitcnt lgkmcnt(4)\nv_max3_f32 v28, v8, v10, v12\nv_max_f32 v28, v28, v14\nv_mov_b32 v25, s33\nv_mov_b32 v27, s33\nv_mov_b32 v29, s33\nv_mov_b32 v31, s33")
    for w in range(4): g(f"v_sub_f32 v{8+2*w}, v{8+2*w}, v28\nv_mul_f32 v{8+2*w}, s35, v{8+2*w}\nv_exp_f32 v{8+2*w}, v{8+2*w}")
    g("s_waitcnt lgkmcnt(0)\nv_mul_f32 v24, v8, v16\nv_mul_f32 v26, v8, v17\nv_mul_f32 v30, v8, v9")
    for w in range(1,4): g(f"v_fmac_f32 v24, v{8+2*w}, v{16+2*w}\nv_fmac_f32 v26, v{8+2*w}, v{17+2*w}\nv_fmac_f32 v30, v{8+2*w}, v{9+2*w}")
    g(f"""buffer_store_dwordx4 v[24:27], v4, s[12:15], s40 offen sc1
    s_cmp_lg_u32 s38, 0
    s_cbranch_scc1 L_noml
    s_mov_b64 exec, 1
    buffer_store_dwordx4 v[28:31], v4, s[12:15], s43 offen sc1
    s_mov_b64 exec, -1
    L_noml:""")
    g.ts(4)
    g(f"""s_cmp_ge_u32 s2, 224
    s_cbranch_scc1 L_send
    s_mul_i32 s38, s2, 9363
    s_lshr_b32 s38, s38, 16          ; ks = w/7
    s_lshr_b32 s39, s38, 1
    s_lshl_b32 s39, s39, 9
    s_lshl_b32 s40, s32, 7
    s_add_u32 s39, s39, s40
    s_add_u32 s39, s39, {W_ML}
    s_lshl_b32 s38, s38, 15
    s_lshl_b32 s40, s32, 13
    s_add_u32 s38, s38, s40
    s_add_u32 s38, s38, {W_P}
    s_add_u32 s40, s38, 4096
    v_and_b32 v5, 7, v1
    v_lshlrev_b32 v5, 4, v5""")
    l=spin_begin(g,"ml")
    g("buffer_load_dwordx4 v[8:11], v5, s[12:15], s39 offen sc1\ns_waitcnt vmcnt(0)")
    tagchk(g,[9,11],6); spin_end(g,l,o.get('sl_ml',2))
    g.ts(5)
    l=spin_begin(g,"pd")
    for n in range(8): g(f"buffer_load_dwordx4 {r(40+4*n,4)}, v4, s[12:15], s{38 if n<4 else 40} offen offset:{1024*(n&3)} sc1")
    g(f"""v_max_f32_dpp v12, v8, v8 quad_perm:[1,0,3,2] {DPPA}
    s_nop 1
    v_max_f32_dpp v12, v12, v12 quad_perm:[2,3,0,1] {DPPA}
    v_sub_f32 v12, v8, v12
    v_mul_f32 v12, s35, v12
    v_exp_f32 v12, v12
    s_nop 0
    v_mul_f32 v13, v12, v10
    s_nop 1
    v_add_f32_dpp v13, v13, v13 quad_perm:[1,0,3,2] {DPPA}
    s_nop 1
    v_add_f32_dpp v13, v13, v13 quad_perm:[2,3,0,1] {DPPA}
    v_rcp_f32 v13, v13
    s_nop 0
    v_mul_f32 v12, v12, v13
    s_nop 0""")
    for n in range(8): g(f"v_readlane_b32 s{48+n}, v12, {n}")
    g("s_waitcnt vmcnt(0)")
    tagchk(g,[41+2*k for k in range(16)],6); spin_end(g,l,0)
    for b in range(2):
        g(f"v_mul_f32 v{16+2*b}, s{48+4*b}, v{40+16*b}\nv_mul_f32 v{17+2*b}, s{48+4*b}, v{42+16*b}")
        for p in range(1,4): g(f"v_fmac_f32 v{16+2*b}, s{48+4*b+p}, v{40+16*b+4*p}\nv_fmac_f32 v{17+2*b}, s{48+4*b+p}, v{42+16*b+4*p}")
    g(f"""s_mul_i32 s38, s32, {2*AS}
    v_lshl_add_u32 v5, v1, 2, s38
    v_cvt_pk_bf16_f32 v16, v16, v17
    v_cvt_pk_bf16_f32 v18, v18, v19
    ds_write_b32 v5, v16 offset:{L_A}
    ds_write_b32 v5, v18 offset:{L_A+AS}
    s_waitcnt lgkmcnt(0)
    s_barrier
    L_send:""")
    g.ts(6); g.tsdump(1)
    g("s_endpgm")

XA, RW, BT, D0, BW = 8, 72, 104, 112, 136
import os
WF = os.environ.get("WF","nt")
def wq_setup(g, sr):
    srd(g, sr, 22, 448*8192)
    g(f"""s_lshr_b32 s73, s2, 5
    s_lshl_b32 s73, s73, 5
    s_and_b32 s38, s2, 7
    s_lshl_b32 s38, s38, 2
    s_add_u32 s73, s73, s38
    s_bfe_u32 s38, s2, 0x20003
    s_add_u32 s73, s73, s38
    s_lshl_b32 s38, s73, 5
    v_and_b32 v3, 1, v1
    v_lshl_add_u32 v3, v3, 4, s38
    v_lshrrev_b32 v2, 1, v1
    v_lshl_add_u32 v2, v2, 13, v3""")
def dma(g, sr, ns, lbase, off, base=None, fl=""):
    for n in ns:
        g(f"s_mov_b32 m0, {lbase+1024*n}")
        g(f"s_mov_b32 s40, {off(n)}" if base is None else f"s_add_u32 s40, s{base}, {off(n)}")
        g(f"buffer_load_dwordx4 v2, s[{sr}:{sr+3}], s40 offen {fl} lds")
def proj_mma(g, D, lbase):
    for s in range(14):
        for u in range(2): g(f"ds_read_b64_tr_b16 {r(BW+4*s+2*u,2)}, v64 offset:{lbase+1024*s+128*u}")
        if s==6 or s==13:
            g("s_waitcnt lgkmcnt(0)")
            for q in range(s-6,s+1): g(f"v_mfma_f32_16x16x32_bf16 {r(D,4)}, {r(XA+4*q,4)}, {r(BW+4*q,4)}, {'0' if q==0 else r(D,4)}")
def pairpack(g, D, o):
    g(f"""v_cndmask_b32 v{BT}, v{D}, v{D+2}, s[54:55]
    v_cndmask_b32 v{BT+1}, v{D+1}, v{D+3}, s[54:55]
    s_nop 1
    v_mov_b32_dpp v{BT+2}, v{BT} quad_perm:[1,0,3,2] {DPPA}
    v_mov_b32_dpp v{BT+3}, v{BT+1} quad_perm:[1,0,3,2] {DPPA}
    v_cndmask_b32 v{o+1}, v{BT+2}, v{BT+1}, s[56:57]
    v_cndmask_b32 v{o}, v{BT}, v{BT+3}, s[56:57]""")
def wslice_regs(g, lbase):
    for t in range(4):
        for c in range(4):
            for u in range(2): g(f"ds_read_b64_tr_b16 {r(BW+16*t+4*c+2*u,2)}, v65 offset:{lbase+4096*t+512*u+32*c}")
        g("s_waitcnt lgkmcnt(0)")
def wslice_mma_store(g, A, jobb):
    for t in range(4):
        for e in range(4): g(f"v_mfma_f32_16x16x32_bf16 {r(D0+4*e,4)}, {r(A+4*t,4)}, {r(BW+16*t+4*e,4)}, {'0' if t==0 else r(D0+4*e,4)}")
    for q in range(4): g(f"v_mov_b32 v{RW+4*q+1}, s33\nv_mov_b32 v{RW+4*q+3}, s33")
    for q in range(4):
        g(f"""v_cndmask_b32 v{RW+4*q}, v{D0+q}, v{D0+8+q}, s[54:55]
        v_cndmask_b32 v{RW+4*q+2}, v{D0+4+q}, v{D0+12+q}, s[54:55]
        s_add_u32 s40, s43, {q*28*jobb}
        buffer_store_dwordx4 {r(RW+4*q,4)}, v6, s[12:15], s40 offen sc1""")
def joboff(g, jobb):
    g(f"""v_and_b32 v6, 1, v5
    v_mul_u32_u24 v6, 112, v6
    v_and_b32 v7, 2, v5
    v_add_u32 v6, v6, v7
    v_lshrrev_b32 v7, 3, v4
    v_add_u32 v6, v6, v7
    v_mul_u32_u24 v6, {jobb}, v6
    v_and_b32 v7, 7, v4
    v_lshl_add_u32 v6, v7, 4, v6""")
def red8x2(g, v, t):
    g(f"s_nop 0\nv_add_f32_dpp v{v}, v{v}, v{v} row_ror:8 {DPPA}\nv_add_f32_dpp v{v+1}, v{v+1}, v{v+1} row_ror:8 {DPPA}")
    for sw in ("16","32"):
        g(f"""v_mov_b32 v{t}, v{v}
        v_mov_b32 v{t+1}, v{v+1}
        s_nop 0
        v_permlane{sw}_swap_b32 v{v}, v{t}
        v_permlane{sw}_swap_b32 v{v+1}, v{t+1}
        v_add_f32 v{v}, v{v}, v{t}
        v_add_f32 v{v+1}, v{v+1}, v{t+1}""")
def rbf2(g, v): g(f"v_cvt_pk_bf16_f32 v{v+1}, v{v}, v{v+1}\nv_lshlrev_b32 v{v}, 16, v{v+1}\nv_and_b32 v{v+1}, 0xffff0000, v{v+1}")
def div7(g, src): g(f"s_mul_i32 s39, s{src}, 9363\ns_lshr_b32 s39, s39, 16\ns_mul_i32 s40, s39, 7\ns_sub_u32 s38, s{src}, s40\ns_mul_i32 s42, s39, {128*896}\ns_lshl_b32 s40, s38, 7\ns_add_u32 s42, s42, s40")

def helper(g):
    o=g.o
    g("s_setprio 3")
    srd(g, 44, 16, 7168)
    X=PA
    g(f"""s_mul_i32 s38, s3, 1792
    v_lshl_add_u32 v{T0}, v1, 4, s38""")
    for k in range(8): g(f"v_mov_b32 v{X+k}, 0")
    g(f"""s_mov_b32 exec_hi, 0xffffff
    buffer_load_dwordx4 {r(X,4)}, v{T0}, s[44:47], 0 offen
    buffer_load_dwordx4 {r(X+4,4)}, v{T0}, s[44:47], 0 offen offset:896
    s_mov_b32 exec_hi, -1""")
    wq_setup(g, 4)
    g(f"s_lshl_b32 s38, s3, 10\ns_add_u32 m0, s38, {L_W0}\ns_lshl_b32 s38, s3, 18")
    for n in range(4):
        if n==3: g("s_cmp_ge_u32 s3, 2\ns_cbranch_scc1 L_wq3")
        g(f"buffer_load_dwordx4 v2, s[4:7], s38 offen {WF} lds\ns_add_u32 m0, m0, 4096\ns_add_u32 s38, s38, {128*8192}")
    g(f"""L_wq3:
    s_barrier
    s_mul_i32 s38, s3, {2*XNS}
    v_lshl_add_u32 v{T0+1}, v1, 4, s38""")
    g.ts(1)
    g(f"""v_and_b32 v4, 15, v1
    v_lshrrev_b32 v5, 4, v1
    s_mov_b32 s54, 0
    s_mov_b32 s55, -1
    s_mov_b32 s56, 0xaaaaaaaa
    s_mov_b32 s57, 0xaaaaaaaa
    v_lshlrev_b32 v64, 8, v5
    v_lshl_add_u32 v64, v4, 3, v64
    v_lshrrev_b32 v7, 2, v4
    v_lshlrev_b32 v65, 10, v5
    v_lshl_add_u32 v65, v7, 7, v65
    v_and_b32 v7, 3, v4
    v_lshl_add_u32 v65, v7, 3, v65
    v_and_b32 v7, 7, v4
    v_mul_u32_u24 v66, {XNS}, v7
    v_lshl_add_u32 v66, v5, 4, v66
    v_and_b32 v6, 1, v5
    v_lshlrev_b32 v6, 2, v6
    v_and_b32 v7, 2, v5
    v_add_u32 v6, v6, v7
    v_and_b32 v7, 1, v4
    v_add_u32 v67, v6, v7
    v_lshrrev_b32 v7, 1, v4
    v_lshlrev_b32 v68, 3, v7
    v_lshl_add_u32 v69, v67, 6, v68
    v_lshlrev_b32 v70, 4, v1
    s_lshl_b32 s38, s73, 9
    s_add_u32 s38, s38, {W_Q}
    s_bfe_u32 s39, s2, 0x30002
    s_lshl_b32 s39, s39, 14
    s_lshr_b32 s40, s2, 5
    s_lshl_b32 s40, s40, 6
    s_add_u32 s39, s39, s40
    s_add_u32 s39, s39, {W_Q}
    s_add_u32 s42, s39, 8192
    v_lshrrev_b32 v71, 2, v1
    v_lshlrev_b32 v71, 9, v71
    v_and_b32 v7, 3, v1
    v_lshl_add_u32 v71, v7, 4, v71
""")
    F=VQ; t=VQ+16
    def red64(v):
        for c in ("quad_perm:[1,0,3,2]","quad_perm:[2,3,0,1]","row_ror:4","row_ror:8"):
            g(f"s_nop 0\nv_add_f32_dpp v{v}, v{v}, v{v} {c} {DPPA}\nv_add_f32_dpp v{v+1}, v{v+1}, v{v+1} {c} {DPPA}")
        for sw in ("16","32"):
            g(f"""v_mov_b32 v{t+8}, v{v}
            v_mov_b32 v{t+9}, v{v+1}
            s_nop 0
            v_permlane{sw}_swap_b32 v{v}, v{t+8}
            v_permlane{sw}_swap_b32 v{v+1}, v{t+9}
            v_add_f32 v{v}, v{v}, v{t+8}
            v_add_f32 v{v+1}, v{v+1}, v{t+9}""")
        g(f"v_mul_f32 v{v}, {f2u(1/448):#x}, v{v}\nv_mul_f32 v{v+1}, {f2u(1/448):#x}, v{v+1}")
    def rb2(v): g(f"v_cvt_pk_bf16_f32 v{v+1}, v{v}, v{v+1}\nv_lshlrev_b32 v{v}, 16, v{v+1}\nv_and_b32 v{v+1}, 0xffff0000, v{v+1}")
    g(f"s_waitcnt vmcnt(3)")
    for n in range(8): g(f"v_lshlrev_b32 v{F+2*n}, 16, v{X+n}\nv_and_b32 v{F+2*n+1}, 0xffff0000, v{X+n}")
    g(f"v_add_f32 v{t}, v{F}, v{F+1}\nv_add_f32 v{t+1}, v{F+8}, v{F+9}")
    for k in range(2,8): g(f"v_add_f32 v{t}, v{t}, v{F+k}\nv_add_f32 v{t+1}, v{t+1}, v{F+8+k}")
    red64(t)
    g(f"v_mov_b32 v{t+2}, 0\nv_mov_b32 v{t+3}, 0\ns_mov_b32 exec_hi, 0xffffff")
    for k in range(16): g(f"v_sub_f32 v{t+4}, v{F+k}, v{t+(k>>3)}\nv_fmac_f32 v{t+2+(k>>3)}, v{t+4}, v{t+4}")
    g("s_mov_b32 exec_hi, -1\ns_nop 0")
    red64(t+2)
    rb2(t); rb2(t+2)
    g(f"v_add_f32 v{t+2}, {f2u(1e-5):#x}, v{t+2}\nv_add_f32 v{t+3}, {f2u(1e-5):#x}, v{t+3}"); rb2(t+2)
    g(f"v_sqrt_f32 v{t+2}, v{t+2}\nv_sqrt_f32 v{t+3}, v{t+3}\ns_nop 0"); rb2(t+2)
    g(f"v_rcp_f32 v{t+4}, v{t+2}\nv_rcp_f32 v{t+5}, v{t+3}")
    for k in range(16): g(f"v_sub_f32 v{F+k}, v{F+k}, v{t+(k>>3)}")
    for n in range(8): rb2(F+2*n)
    for k in range(16): g(f"v_mul_f32 v{t+6}, v{F+k}, v{t+4+(k>>3)}\nv_fma_f32 v{F+k}, -v{t+6}, v{t+2+(k>>3)}, v{F+k}\nv_fma_f32 v{F+k}, v{F+k}, v{t+4+(k>>3)}, v{t+6}")
    for n in range(8): g(f"v_cvt_pk_bf16_f32 v{X+n}, v{F+2*n}, v{F+2*n+1}")
    g(f"""s_mov_b32 exec_hi, 0xffffff
    ds_write_b128 v{T0+1}, {r(X,4)} offset:{L_XN}
    ds_write_b128 v{T0+1}, {r(X+4,4)} offset:{L_XN+XNS}
    s_mov_b32 exec_hi, -1
    s_waitcnt vmcnt(0)""")
    def bump(off): g(f"s_waitcnt vmcnt(0) lgkmcnt(0)\nv_mov_b32 v6, 0\nv_mov_b32 v7, 1\ns_mov_b64 exec, 1\nds_add_u32 v6, v7 offset:{L_CNT+off}\ns_mov_b64 exec, -1")
    def ldswait(off, cmp, val, sleep):
        l=g.lab("lw")
        g(f"v_mov_b32 v6, 0\n{l}:" + (f"\ns_sleep {sleep}" if sleep else "") + f"\nds_read_b32 v7, v6 offset:{L_CNT+off}\ns_waitcnt lgkmcnt(0)\nv_readfirstlane_b32 s40, v7\ns_cmp_{cmp}_u32 s40, {val}\ns_cbranch_scc1 {l}")
    bump(4)
    g("s_cmp_lg_u32 s3, 0\ns_cbranch_scc1 L_b1")
    ldswait(4, "lt", 4, 0)
    g.ts(2)
    for s in range(14): g(f"ds_read_b128 {r(XA+4*s,4)}, v66 offset:{L_XN+64*s}")
    proj_mma(g, D0, L_W0)
    g(f"v_mov_b32 v{RW+1}, s33\ns_nop 6")
    pairpack(g, D0, D0+4)
    g(f"v_cvt_pk_bf16_f32 v{RW}, v{D0+4}, v{D0+5}\nbuffer_store_dwordx2 {r(RW,2)}, v69, s[12:15], s38 offen sc1")
    g.ts(3)
    if o.get('pp'):
        def qp(k): g(f"buffer_load_dwordx4 {r(BW+8*k,4)}, v71, s[12:15], s39 offen sc1\nbuffer_load_dwordx4 {r(BW+8*k+4,4)}, v71, s[12:15], s42 offen sc1\ns_sleep {o['pp']}")
        NP=4
        for k in range(NP-1): qp(k)
        g(f"s_mov_b32 s41, {SPIN}\nL_qp:")
        for k in range(NP):
            qp((k+NP-1)%NP)
            g(f"s_waitcnt vmcnt({2*NP-2})")
            for x in range(8): g(f"v_mov_b32 v{RW+4+x}, v{BW+8*k+x}")
            tagchk(g,[RW+5,RW+7,RW+9,RW+11],BT); g("s_cbranch_vccz L_qok")
        g("s_sub_u32 s41, s41, 1\ns_cmp_lg_u32 s41, 0\ns_cbranch_scc1 L_qp\nL_qok:")
    else:
        l=spin_begin(g,"q")
        g(f"buffer_load_dwordx4 {r(RW+4,4)}, v71, s[12:15], s39 offen sc1\nbuffer_load_dwordx4 {r(RW+8,4)}, v71, s[12:15], s42 offen sc1\ns_waitcnt vmcnt(0)")
        tagchk(g,[RW+5,RW+7,RW+9,RW+11],BT); spin_end(g,l,0)
    g(f"""v_lshlrev_b32 v6, 3, v1
    v_add_u32 v6, {L_Q}, v6
    ds_write2_b32 v6, v{RW+4}, v{RW+6} offset0:0 offset1:1
    ds_write2_b32 v6, v{RW+8}, v{RW+10} offset0:128 offset1:129
    s_waitcnt lgkmcnt(0)
    L_b1:
    s_barrier""")
    g.ts(4)
    if o.get('noside'): g("s_branch L_hend")
    g("s_cmp_ge_u32 s2, 224\ns_cbranch_scc1 L_nowo")
    div7(g, 2)
    g(f"""v_lshrrev_b32 v2, 4, v1
    v_bfe_u32 v7, v1, 3, 1
    v_lshl_add_u32 v2, v2, 3, v7
    v_mul_u32_u24 v2, 896, v2
    v_and_b32 v7, 7, v1
    v_lshl_add_u32 v2, v7, 4, v2""")
    srd(g, 8, 24, 4096*896)
    g(f"s_mul_i32 s40, s3, {2*896}\ns_add_u32 s42, s42, s40\ns_lshl_b32 s40, s3, 12\ns_add_u32 m0, s40, {L_W1}\ns_nop 0")
    for n in range(4): g(f"buffer_load_dwordx4 v2, s[8:11], s42 offen nt lds\ns_add_u32 m0, m0, 1024\ns_add_u32 s42, s42, {32*896}")
    g("L_nowo:")
    if o.get('noj23'): g("s_mov_b32 s58, 99")
    elif o.get('claim'):
        g("s_cmp_lg_u32 s3, 0\ns_cbranch_scc1 L_getjob")
        srd(g, 60, 68, 256)
        ldswait(0, "lt", o['claim'], 16)
        g(f"""v_mov_b32 v7, 1
        s_mov_b64 exec, 1
        buffer_atomic_add v7, v6, s[60:63], 0 offen sc0 sc1
        s_waitcnt vmcnt(0)
        v_add_u32 v7, 1, v7
        ds_write_b32 v6, v7 offset:{L_CNT+8}
        s_mov_b64 exec, -1
        L_getjob:""")
        ldswait(8, "eq", 0, 16)
        g("s_sub_u32 s58, s40, 1")
    else:
        g("s_and_b32 s40, s2, 3\ns_bfe_u32 s58, s2, 0x20003\ns_cmp_lg_u32 s40, s58\ns_cselect_b32 s40, 99, 0\ns_lshr_b32 s58, s2, 2\ns_add_u32 s58, s58, s40")
    g(f"""s_cmp_ge_u32 s58, 42
    s_cbranch_scc1 L_nojob
    s_lshl_b32 s59, s58, 7
    s_add_u32 s59, s59, {W_F}
    s_cmp_ge_u32 s58, 28
    s_cbranch_scc1 L_j3
    v_lshrrev_b32 v2, 3, v1
    v_mul_u32_u24 v2, 3584, v2
    v_and_b32 v7, 7, v1
    v_lshl_add_u32 v2, v7, 4, v2
    s_lshl_b32 s42, s58, 7""")
    def join():
        bump(12)
        g("s_cmp_lg_u32 s3, 0\ns_cbranch_scc1 L_exit")
        ldswait(12, "lt", 4, 4)
    def wpass(D, first):
        g("s_waitcnt vmcnt(0)")
        for t in range(14):
            B=BW+16*(t&1)
            for c in range(4):
                for u in range(2): g(f"ds_read_b64_tr_b16 {r(B+4*c+2*u,2)}, v71 offset:{4096*t+512*u+32*c}")
            g("s_waitcnt lgkmcnt(0)")
            for c in range(4): g(f"v_mfma_f32_16x16x32_bf16 {r(D+4*c,4)}, {r(XA+4*t,4)}, {r(B+4*c,4)}, {'0' if (t==0 and first) else r(D+4*c,4)}")
    def dmaloop(sr, lb, n_out, step_out, step_in):
        l=g.lab("dma")
        g(f"s_lshl_b32 s40, s3, 11\ns_add_u32 m0, s40, {lb}\ns_mul_i32 s40, s3, {2*step_in}\ns_add_u32 s40, s40, s42\ns_mov_b32 s41, {n_out}\n{l}:")
        g(f"""buffer_load_dwordx4 v2, s[{sr}:{sr+3}], s40 offen nt lds
        s_add_u32 m0, m0, 1024
        s_add_u32 s40, s40, {step_in}
        buffer_load_dwordx4 v2, s[{sr}:{sr+3}], s40 offen nt lds
        s_add_u32 m0, m0, 7168
        s_add_u32 s40, s40, {step_out-step_in}
        s_sub_u32 s41, s41, 1
        s_cmp_lg_u32 s41, 0
        s_cbranch_scc1 {l}""")
    D1=BW+32
    srd(g, 4, 28, 448*3584); srd(g, 44, 30, 448*3584)
    dmaloop(4, L_W0, 7, 64*3584, 8*3584); dmaloop(44, L_W0+57344, 7, 64*3584, 8*3584); join()
    g(f"v_add_u32 v71, {L_W0}, v65"); wpass(D0, True)
    g(f"v_add_u32 v71, {L_W0+57344}, v65"); wpass(D1, True)
    g("s_nop 7")
    for c in range(4):
        pairpack(g, D0+4*c, RW+4); pairpack(g, D1+4*c, RW+6); rbf2(g, RW+4); rbf2(g, RW+6)
        g(f"v_mul_f32 v{RW+4}, v{RW+4}, v{RW+6}\nv_mul_f32 v{RW+5}, v{RW+5}, v{RW+7}\nv_cvt_pk_bf16_f32 v{RW+c}, v{RW+4}, v{RW+5}")
    g(f"""v_mul_u32_u24 v69, 3584, v67
    v_lshl_add_u32 v69, v68, 1, v69
    s_lshl_b32 s38, s58, 7
    s_add_u32 s38, s38, {W_H}
    buffer_store_dwordx4 {r(RW,4)}, v69, s[12:15], s38 offen sc1
    s_branch L_flag
    L_j3:
    s_sub_u32 s38, s58, 28
    s_cmp_ge_u32 s38, 7
    s_cselect_b32 s39, 1, 0          ; K half
    s_mul_i32 s40, s39, 7
    s_sub_u32 s40, s38, s40          ; ns
    s_lshl_b32 s40, s40, 7
    s_mul_i32 s42, s39, {896*896}
    s_add_u32 s42, s42, s40
    v_lshrrev_b32 v2, 4, v1
    v_bfe_u32 v7, v1, 3, 1
    v_lshl_add_u32 v2, v2, 4, v7
    v_mul_u32_u24 v2, 896, v2
    v_and_b32 v7, 7, v1
    v_lshl_add_u32 v2, v7, 4, v2
    v_mul_u32_u24 v69, 3584, v7
    v_lshl_add_u32 v69, v5, 4, v69
    v_add_u32 v71, {L_W0}, v65
    s_mul_i32 s43, s39, 1792
    s_add_u32 s52, s43, {W_F}
    s_add_u32 s43, s43, {W_H}
""")
    srd(g, 4, 64, 1792*896); dmaloop(4, L_W0, 14, 64*896, 2*896); join()
    g("v_min_u32 v6, 13, v1\nv_lshlrev_b32 v6, 7, v6")
    l=spin_begin(g,"hf")
    g(f"buffer_load_dword v{RW}, v6, s[12:15], s52 offen sc1\ns_waitcnt vmcnt(0)")
    tagchk(g,[RW],BT); spin_end(g,l,64)
    for t in range(14): g(f"buffer_load_dwordx4 {r(XA+4*t,4)}, v69, s[12:15], s43 offen offset:{64*t} sc1")
    wpass(D0, True)
    g(f"v_add_u32 v71, {L_W0+57344}, v65\ns_nop 7")
    for t in range(14): g(f"buffer_load_dwordx4 {r(XA+4*t,4)}, v69, s[12:15], s43 offen offset:{896+64*t} sc1")
    wpass(D0, False)
    g(f"""v_and_b32 v6, 1, v5
    v_lshlrev_b32 v6, 2, v6
    v_and_b32 v7, 2, v5
    v_add_u32 v6, v6, v7
    v_lshlrev_b32 v6, 8, v6
    v_lshl_add_u32 v6, v4, 4, v6
    s_lshl_b32 s38, s38, 11
    s_add_u32 s38, s38, {W_Y}""")
    for q in range(2):
        for c in range(4): g(f"v_cndmask_b32 v{RW+4*q+c}, v{D0+4*c+q}, v{D0+4*c+2+q}, s[54:55]")
        g(f"buffer_store_dwordx4 {r(RW+4*q,4)}, v6, s[12:15], s38 offen offset:{256*q} sc1")
    g(f"""L_flag:
    s_waitcnt vmcnt(0)
    v_mov_b32 v6, s33
    s_mov_b64 exec, 1
    buffer_store_dword v6, v70, s[12:15], s59 offen sc1
    s_mov_b64 exec, -1
    s_branch L_noj3
    L_nojob:""")
    join()
    g(f"""L_noj3:
    s_cmp_ge_u32 s2, 224
    s_cbranch_scc1 L_hend""")
    div7(g, 2)
    g("v_and_b32 v7, 7, v1")
    g(f"""s_lshl_b32 s43, s38, 14
    s_lshl_b32 s40, s39, 7
    s_add_u32 s43, s43, s40
    s_add_u32 s43, s43, {W_S}
    s_lshr_b32 s38, s2, 1
    s_lshl_b32 s38, s38, 6
    s_and_b32 s40, s2, 1
    s_lshl_b32 s40, s40, 4
    s_add_u32 s38, s38, s40
    v_lshl_add_u32 v36, v7, 1, s38""")
    srd(g, 44, 16, 7168); srd(g, 48, 66, 7168)
    g(f"buffer_load_ushort v34, v36, s[44:47], 0 offen\nbuffer_load_ushort v35, v36, s[44:47], 0 offen offset:32\ns_waitcnt vmcnt(0)")
    wslice_regs(g, L_W1); joboff(g, 4096)
    g(f"""v_lshlrev_b32 v34, 16, v34
    v_lshlrev_b32 v35, 16, v35
    v_mul_u32_u24 v38, {AS}, v7
    v_lshl_add_u32 v38, v5, 4, v38
    s_mul_i32 s38, s2, 2341
    s_lshr_b32 s38, s38, 16          ; b = w/28
    s_mul_i32 s39, s38, 28
    s_sub_u32 s39, s2, s39
    s_lshr_b32 s40, s39, 2           ; ns
    s_lshl_b32 s52, s40, 7
    s_add_u32 s52, s52, {W_F+28*128}
    s_lshl_b32 s40, s40, 11
    s_lshl_b32 s38, s38, 8
    s_add_u32 s38, s38, s40
    s_and_b32 s40, s39, 1
    s_lshl_b32 s40, s40, 7
    s_add_u32 s38, s38, s40
    s_and_b32 s40, s39, 2
    s_lshl_b32 s40, s40, 2
    s_add_u32 s38, s38, s40
    s_add_u32 s38, s38, {W_Y}
    v_bfe_u32 v39, v1, 3, 1
    v_mul_u32_u24 v37, 896, v39
    v_mul_u32_u24 v39, 14336, v39
    v_lshl_add_u32 v39, v7, 4, v39""")
    g.ts(5)
    if o.get('notail'): g("s_branch L_hend")
    g("s_barrier")
    l=spin_begin(g,"y")
    g(f"buffer_load_dword v{RW}, v37, s[12:15], s52 offen sc1\ns_waitcnt vmcnt(0)")
    tagchk(g,[RW],BT)
    if o.get('noj23'): g("s_mov_b64 vcc, 0")
    spin_end(g,l,8)
    g(f"""buffer_load_dwordx2 v[32:33], v39, s[12:15], s38 offen sc1
    s_waitcnt vmcnt(0)
    v_add_f32_dpp v32, v32, v32 row_ror:8 {DPPA}
    v_add_f32_dpp v33, v33, v33 row_ror:8 {DPPA}""")
    rbf2(g,32)
    for v in (32,33):
        g(f"""v_mul_f32 v{BT}, {f2u(-1.4426950408889634):#x}, v{v}
        v_exp_f32 v{BT}, v{BT}
        s_nop 0
        v_add_f32 v{BT}, 1.0, v{BT}
        v_rcp_f32 v{BT}, v{BT}
        s_nop 0
        v_mul_f32 v{v}, v{v}, v{BT}""")
    rbf2(g,32)
    g(f"s_lshl_b32 s38, s2, 12\ns_add_u32 s38, s38, {W_S}\ns_barrier")
    for t in range(4): g(f"ds_read_b128 {r(XA+4*t,4)}, v38 offset:{L_A+64*t}")
    g("s_waitcnt lgkmcnt(0)")
    wslice_mma_store(g, XA, 4096)
    g.ts(6)
    R2=RW+16
    l=spin_begin(g,"s")
    for n in range(4): g(f"buffer_load_dwordx4 {r(R2+4*n,4)}, v70, s[12:15], s38 offen offset:{1024*n} sc1")
    g("s_waitcnt vmcnt(0)")
    tagchk(g,[R2+1+2*k for k in range(8)],BT); spin_end(g,l,o.get('sl_s',1))
    g(f"""v_add_f32 v{R2}, v{R2}, v{R2+4}
    v_add_f32 v{R2+2}, v{R2+2}, v{R2+6}
    v_add_f32 v{R2+8}, v{R2+8}, v{R2+12}
    v_add_f32 v{R2+10}, v{R2+10}, v{R2+14}
    v_add_f32 v30, v{R2}, v{R2+8}
    v_add_f32 v31, v{R2+2}, v{R2+10}""")
    red8x2(g,30,BT); rbf2(g,30)
    g("v_mul_f32 v30, v30, v32\nv_mul_f32 v31, v31, v33"); rbf2(g,30)
    g(f"""v_add_f32 v30, v30, v34
    v_add_f32 v31, v31, v35
    v_cvt_pk_bf16_f32 v31, v30, v31
    s_mov_b64 exec, 0xff
    buffer_store_short v31, v36, s[48:51], 0 offen
    buffer_store_short_d16_hi v31, v36, s[48:51], 0 offen offset:32
    s_cmp_lg_u32 s2, 0
    s_cbranch_scc1 L_hend
    s_mov_b64 exec, 1
    v_mov_b32 v30, s33
    buffer_store_dword v30, v70, s[12:15], 0 offen sc1
    L_hend:""")
    g.ts(7); g.tsdump()
    g("s_endpgm")

def build(opt):
    g=G(opt)
    hdr=open("cdna_kernels/"+NAME+".s.ref").read().split("; Override launch")[0]
    g.L.append(hdr+f"; @launch grid=(256,1,1) block=(512,1,1) lds={LDS}")
    g.L.append(f'.amdgcn_target "amdgcn-amd-amdhsa--gfx950"\n.text\n.globl {NAME}_kernel\n.p2align 8\n.type {NAME}_kernel,@function\n{NAME}_kernel:')
    g.ts(0)
    g(f"""s_cmp_ge_u32 s2, 256
    s_cbranch_scc1 L_exit
    s_load_dwordx16 s[16:31], s[0:1], 0
    s_load_dwordx8 s[64:71], s[0:1], 64
    v_lshrrev_b32 v2, 6, v0
    v_and_b32 v1, 63, v0
    v_mov_b32 v6, 0
    v_mov_b32 v8, {12 if opt.get('nl') else 8}
    v_mov_b32 v9, 0
    v_mov_b32 v10, 0
    v_mov_b32 v11, 0
    ds_write_b128 v6, v[8:11] offset:{L_CNT}
    v_readfirstlane_b32 s3, v2
    s_waitcnt lgkmcnt(0)
    s_load_dword s72, s[70:71], 0""")
    srd(g, 12, 70, W_END)
    g("s_cmp_lt_u32 s3, 4\ns_cbranch_scc1 L_helper")
    mark=len(g.L); stream(g)
    g("L_helper:"); mark2=len(g.L); helper(g)
    for m in (mark2, mark):
        k=next(i for i in range(m,len(g.L)) if g.L[i].strip()=="s_waitcnt lgkmcnt(0)")
        g.L.insert(k+1,"  s_add_u32 s33, s72, 0x9e3779b9")
    g("L_exit:\ns_endpgm")
    g.L.append(f""".section .rodata,"a"
.p2align 6
.amdhsa_kernel {NAME}_kernel
  .amdhsa_next_free_vgpr 224
  .amdhsa_next_free_sgpr 102
  .amdhsa_accum_offset 224
  .amdhsa_group_segment_fixed_size 0
  .amdhsa_kernarg_size 96
  .amdhsa_user_sgpr_count 2
  .amdhsa_user_sgpr_kernarg_segment_ptr 1
  .amdhsa_system_sgpr_workgroup_id_x 1
.end_amdhsa_kernel""")
    return "\n".join(g.L)+"\n"

if __name__=="__main__":
    opt=eval(sys.argv[2]) if len(sys.argv)>2 else {}
    open(sys.argv[1],"w").write(build(opt))
```

```python
import sys, struct
NAME = "recurrent_scan__gqa_block_cached__glu_gated_bilinear__decode"
def f2u(x): return struct.unpack('<I', struct.pack('<f', x))[0]
CSC = f2u(0.0625*1.4426950408889634)
W_Q, W_H, W_Y, W_S, W_P, W_ML, W_TS, W_END = 0x1000, 0x21000, 0x30000, 0xA0000, 0x180000, 0x280000, 0x290000, 0x300000
L_XN, XNS = 0, 912
L_Q = 7424
L_O = 8448
L_ML = 16640
L_A, AS = 16704, 272
L_CNT = 18944
L_W0, L_W1 = 35840, 19456
LDS = 35840+114688
W_F = 0x28000
DPPA = "row_mask:0xf bank_mask:0xf"
SPIN = 20000

class G:
    def __init__(s, opt): s.L=[]; s.o=opt; s.n=0
    def __call__(s, t):
        for ln in t.split("\n"):
            ln=ln.strip()
            if ln: s.L.append(ln if ln.endswith(":") else "  "+ln)
    def lab(s, p): s.n+=1; return f"L_{p}_{s.n}"
    def ts(s, k):
        if s.o.get('ts'): s(f"s_memrealtime s[{80+2*k}:{81+2*k}]")
    def tsdump(s, role=0):
        if not s.o.get('ts'): return
        if s.o.get('ts')==3:
            srd(s, 60, 68, 256)
            s(f"s_waitcnt lgkmcnt(0)\ns_mov_b64 exec, 1\nv_mov_b32 v7, 0\ns_cmp_lg_u32 s2, 5\ns_cbranch_scc1 L_exit\ns_cmp_lg_u32 s3, {4*role}\ns_cbranch_scc1 L_exit")
            for k in range(1,8): s(f"s_sub_u32 s40, s{80+2*k}, s80\nv_mov_b32 v{8+k}, s40\nbuffer_store_dword v{8+k}, v7, s[60:63], 0 offen offset:{4*k+32*role}")
            return
        if s.o.get('ts')==2:
            srd(s, 60, 68, 256)
            s("s_waitcnt lgkmcnt(0)\ns_mov_b64 exec, 1\nv_mov_b32 v7, 0\ns_cmp_ge_u32 s2, 224\ns_cbranch_scc1 L_exit")
            items=[(1,0,1),(2,2,0),(3,7,1),(4,7,0),(5,3,1),(6,3,0),(7,0,0)] if role else [(8,2,0),(9,3,0),(10,5,0),(11,6,0),(12,7,0)]
            for w,k,inv in items:
                s(f"v_{'not' if inv else 'mov'}_b32 v{8+w}, s{80+2*k}\nbuffer_atomic_umax v{8+w}, v7, s[60:63], 0 offen offset:{4*w} sc1")
            return
        s("s_waitcnt lgkmcnt(0)\ns_mov_b64 exec, 1")
        for k in range(8): s(f"v_mov_b32 v{8+k}, s{80+2*k}")
        s(f"s_mul_i32 s40, s2, 8\ns_add_u32 s40, s40, s3\ns_lshl_b32 s40, s40, 5\ns_add_u32 s40, s40, {W_TS}\nv_mov_b32 v7, 0")
        s("buffer_store_dwordx4 v[8:11], v7, s[12:15], s40 offen\nbuffer_store_dwordx4 v[12:15], v7, s[12:15], s40 offen offset:16")

def r(b, n): return f"v[{b}:{b+n-1}]"

def red_g(g, op, v, t):
    g(f"""v_mov_b32 v{t}, v{v}
    s_nop 1
    v_permlane32_swap_b32 v{v}, v{t}
    s_nop 0
    {op} v{v}, v{v}, v{t}
    v_mov_b32 v{t}, v{v}
    s_nop 1
    v_permlane16_swap_b32 v{v}, v{t}
    s_nop 0
    {op} v{v}, v{v}, v{t}""")

def spin_begin(g, p):
    l=g.lab(p); g(f"s_mov_b32 s41, {SPIN}\n{l}:"); return l
def spin_end(g, l, sleep):
    d=g.lab("dn")
    g(f"""s_cbranch_vccz {d}
    s_sub_u32 s41, s41, 1
    s_cmp_eq_u32 s41, 0
    s_cbranch_scc1 {d}
    s_sleep {sleep}
    s_branch {l}
    {d}:""")
def tagchk(g, regs, t):
    g(f"v_xor_b32 v{t}, s33, v{regs[0]}")
    for x in regs[1:]: g(f"v_xor_b32 v{t+1}, s33, v{x}\nv_or_b32 v{t}, v{t}, v{t+1}")
    g(f"v_cmp_ne_u32 vcc, 0, v{t}\ns_nop 4")

def srd(g, d, p, size): g(f"s_mov_b32 s{d}, s{p}\ns_mov_b32 s{d+1}, s{p+1}\ns_mov_b32 s{d+2}, {size}\ns_mov_b32 s{d+3}, 0x20000")

VK, VV, VQ, KB, S0, ACC, VM, VL, T0, PA, PB = 2, 3, 8, 40, 168, 172, 180, 181, 182, 192, 208
VKA, VVA, VONE, VIDX, VQ4, VK4 = 190, 191, 6, 7, 216, 189
VSC = 188
def buf(s): return KB+32*s
def ld(g, form, s, lds=False):
    g(f"v_add_u32 v{VKA}, s34, v{dict(r=VK,q=VK4,v=VV)[form]}\ns_add_u32 s34, s34, 0x8000")
    st=64 if form=='r' else 256; sr="s[8:11]" if form=='v' else "s[4:7]"; fl=g.o.get('fv' if form=='v' else 'fk','nt')
    for j in range(8):
        if lds: g(f"buffer_load_dwordx4 v{VKA}, {sr}, 0 offen offset:{st*j} {fl} lds\ns_add_u32 m0, m0, {1024-st if j<7 else 1024+7*st}\ns_nop 0")
        else: g(f"buffer_load_dwordx4 {r(buf(s)+4*j,4)}, v{VKA}, {sr}, 0 offen offset:{st*j} {fl}")
def tick(g): g(f"s_mov_b64 exec, 1\nds_add_u32 v4, v{VONE} offset:{L_CNT}\ns_mov_b64 exec, -1")
def unpack(g, t): g(f"v_lshlrev_b32 v{S0}, 16, v{t}\nv_and_b32 v{S0+1}, 0xffff0000, v{t}\nv_lshlrev_b32 v{S0+2}, 16, v{t+1}\nv_and_b32 v{S0+3}, 0xffff0000, v{t+1}")
def kstep(g, s, form, wait, nxt):
    tick(g)
    g(f"s_waitcnt vmcnt({wait})")
    if form=='q':
        for hf in range(2):
            for tt in range(4): g(f"v_mfma_f32_16x16x32_bf16 {r(PA+4*tt,4)}, {r(buf(s)+4*(2*tt+hf),4)}, {r(VQ4+4*hf,4)}, {'0' if hf==0 else r(PA+4*tt,4)}")
    else:
        for j in range(8): g(f"v_mfma_f32_16x16x32_bf16 {r(S0,4)}, {r(buf(s)+4*j,4)}, {r(VQ+4*j,4)}, {'0' if j==0 else r(S0,4)}")
    if nxt: ld(g, nxt, s)
    else: g("s_nop 7")
    if form=='q':
        for tt in range(4): g(f"v_cndmask_b32 v{PA+4*tt}, v{PA+4*tt}, v{PA+4*tt+1}, s[44:45]\nv_cndmask_b32 v{PA+4*tt+2}, v{PA+4*tt+2}, v{PA+4*tt+3}, s[44:45]")
        for tt in range(4): g(f"v_cndmask_b32 v{S0+tt}, v{PA+4*tt}, v{PA+4*tt+2}, s[46:47]")
        for c in (4,8):
            for tt in range(4): g(f"v_add_f32_dpp v{S0+tt}, v{S0+tt}, v{S0+tt} row_ror:{c} {DPPA}")
    t=T0
    g(f"v_cvt_pk_bf16_f32 v{t}, v{S0}, v{S0+1}\nv_cvt_pk_bf16_f32 v{t+1}, v{S0+2}, v{S0+3}\nds_write_b64 v{VSC}, {r(t,2)} offset:{L_O}")
    unpack(g, t)
    g(f"v_add_u32 v{VSC}, 64, v{VSC}\nv_max3_f32 v{VM}, v{S0}, v{S0+1}, v{VM}\nv_max3_f32 v{VM}, v{S0+2}, v{S0+3}, v{VM}")
def vstep(g, s, wait, nxt):
    t=T0
    tick(g)
    g(f"ds_read_b64 {r(t,2)}, v{VSC} offset:{L_O}\nv_add_u32 v{VSC}, 64, v{VSC}\ns_waitcnt lgkmcnt(0)")
    unpack(g, t)
    for k in range(4): g(f"v_fma_f32 v{S0+k}, v{S0+k}, s35, -v{t+4}")
    for k in range(4): g(f"v_exp_f32 v{S0+k}, v{S0+k}")
    g(f"""v_add_f32 v{VL}, v{VL}, v{S0}
    v_cvt_pk_bf16_f32 v{t+2}, v{S0}, v{S0+1}
    v_cvt_pk_bf16_f32 v{t+3}, v{S0+2}, v{S0+3}
    v_add_f32 v{S0+1}, v{S0+1}, v{S0+2}
    v_add_f32 v{VL}, v{VL}, v{S0+3}
    v_add_f32 v{VL}, v{VL}, v{S0+1}""")
    for e in range(8): g(f"v_cndmask_b32 v{PA+2*e}, 0, v{t+2}, s[{48+2*e}:{49+2*e}]\nv_cndmask_b32 v{PA+2*e+1}, 0, v{t+3}, s[{48+2*e}:{49+2*e}]")
    g(f"s_waitcnt vmcnt({wait})")
    V=buf(s); TB=buf(2)
    for n in range(16):
        a,e=n>>3,n&7; sel=36+(e&1); d=4*a+(e>>1)
        g(f"v_perm_b32 v{TB+2*n}, v{V+8+d}, v{V+d}, s{sel}\nv_perm_b32 v{TB+2*n+1}, v{V+24+d}, v{V+16+d}, s{sel}")
    if nxt: ld(g, 'v', s)
    for n in range(16):
        a,e=n&1,n>>1
        g(f"v_mfma_f32_16x16x16_bf16 {r(ACC+4*a,4)}, {r(PA+2*e,2)}, {r(TB+2*(8*a+e),2)}, {r(ACC+4*a,4)}")

def stream(g):
    o=g.o
    g(f"""s_sub_u32 s32, s3, 4
    s_lshl_b32 s4, s2, 20
    s_add_u32 s8, s20, s4
    s_addc_u32 s9, s21, 0
    s_add_u32 s4, s18, s4
    s_addc_u32 s5, s19, 0
    s_mov_b32 s6, 0x100000
    s_mov_b32 s7, 0x20000
    s_mov_b32 s10, 0x100000
    s_mov_b32 s11, 0x20000""")
    g(f"""v_and_b32 v4, 15, v1
    v_lshrrev_b32 v5, 4, v1
    v_lshlrev_b32 v{VK}, 9, v4
    v_lshl_add_u32 v{VK}, v5, 4, v{VK}
    v_lshlrev_b32 v{VV}, 11, v5
    v_lshl_add_u32 v{VV}, v4, 4, v{VV}
    s_lshl_b32 s34, s32, 13""")
    P0,P1=o.get('p0','rqrqrq'),o.get('p1','rq')
    g(f"v_lshrrev_b32 v6, 2, v4\nv_lshlrev_b32 v{VK4}, 11, v6\nv_lshl_add_u32 v{VK4}, v5, 6, v{VK4}\nv_and_b32 v6, 3, v4\nv_lshl_add_u32 v{VK4}, v6, 4, v{VK4}")
    g("s_barrier")
    for k in range(4): ld(g, P0[k], k)
    g(f"s_lshl_b32 s38, s32, 14\ns_add_u32 s38, s38, {L_W0+16384}\ns_mov_b32 m0, s38\nv_lshl_add_u32 v{T0+5}, v1, 4, s38")
    ld(g, P0[4], 0, True); ld(g, P0[5], 0, True)
    g.ts(1)
    g(f"s_mov_b32 s35, {CSC}\ns_mov_b32 s36, 0x05040100\ns_mov_b32 s37, 0x07060302")
    for e in range(8):
        m=0
        for i in range(16):
            if (i&1)+2*(i>>2)==e: m|=1<<i
        m|=m<<16
        g(f"s_mov_b32 s{48+2*e}, {m:#x}\ns_mov_b32 s{49+2*e}, {m:#x}")
    g(f"v_mov_b32 v{VONE}, 1")
    for k in range(8): g(f"v_mov_b32 v{ACC+k}, 0")
    g(f"v_mov_b32 v{VM}, 0xff800000\nv_mov_b32 v{VL}, 0")
    g(f"""v_bfe_u32 v{T0}, v1, 1, 1
    v_lshlrev_b32 v{T0}, 9, v{T0}
    v_lshl_add_u32 v{T0+2}, v5, 6, v{T0}
    v_lshl_add_u32 v{T0}, v5, 4, v{T0}
    v_lshrrev_b32 v7, 2, v4
    v_lshl_add_u32 v{T0+2}, v7, 4, v{T0+2}
    s_mov_b32 s44, 0xf0f0f0f0
    s_mov_b32 s45, s44
    s_mov_b32 s46, 0xff00ff00
    s_mov_b32 s47, s46
    s_barrier""")
    g.ts(2)
    for j in range(2): g(f"ds_read_b128 {r(VQ4+4*j,4)}, v{T0+2} offset:{L_Q+256*j}")
    for j in range(8): g(f"ds_read_b128 {r(VQ+4*j,4)}, v{T0} offset:{L_Q+64*j}")
    g("s_waitcnt lgkmcnt(0)")
    def scaddr(): g(f"s_lshl_b32 s38, s32, 11\nv_and_b32 v{VSC}, 2, v1\nv_lshl_add_u32 v{VSC}, v{VSC}, 2, s38\nv_lshl_add_u32 v{VSC}, v5, 4, v{VSC}")
    def loop(n, body):
        l=g.lab("run"); g(f"s_mov_b32 s38, {n}\n{l}:"); body(); g(f"s_sub_u32 s38, s38, 1\ns_cmp_lg_u32 s38, 0\ns_cbranch_scc1 {l}")
    scaddr()
    kstep(g,0,P0[0],40,P1[0]); kstep(g,1,P0[1],40,P1[1]); kstep(g,2,P0[2],40,None); kstep(g,3,P0[3],32,None)
    g("s_waitcnt vmcnt(16)")
    for j in range(16): g(f"ds_read_b128 {r(buf(2)+4*j,4)}, v{T0+5} offset:{1024*j}")
    g("s_waitcnt lgkmcnt(0)")
    kstep(g,2,P0[4],16,None); kstep(g,3,P0[5],16,None)
    loop(12, lambda: (kstep(g,0,P1[0],8,P1[0]), kstep(g,1,P1[1],8,P1[1])))
    g("s_lshl_b32 s34, s32, 13")
    kstep(g,0,P1[0],8,'v'); kstep(g,1,P1[1],8,'v')
    red_g(g, "v_max_f32", VM, T0)
    g(f"v_mul_f32 v{T0+4}, s35, v{VM}")
    scaddr()
    g.ts(7)
    loop(15, lambda: (vstep(g,0,8,True), vstep(g,1,8,True)))
    vstep(g,0,8,False); vstep(g,1,0,False)
    g.ts(3)
    if o.get('noside') or o.get('notail'): g("s_branch L_send")
    red_g(g, "v_add_f32", VL, T0)
    g(f"""s_lshl_b32 s38, s32, 11
    v_lshl_add_u32 v{T0}, v1, 4, s38
    v_and_b32 v{T0+1}, 2, v1
    v_lshlrev_b32 v{T0+1}, 2, v{T0+1}
    v_lshl_add_u32 v{T0+1}, s32, 4, v{T0+1}
    ds_write_b128 v{T0}, {r(ACC,4)} offset:{L_O}
    ds_write_b128 v{T0}, {r(ACC+4,4)} offset:{L_O+1024}
    ds_write_b64 v{T0+1}, {r(VM,2)} offset:{L_ML}
    s_lshr_b32 s38, s32, 1
    s_and_b32 s39, s32, 1
    s_lshl_b32 s40, s38, 10
    s_lshl_b32 s42, s39, 3
    s_add_u32 s40, s40, s42
    v_lshl_add_u32 v{T0}, v1, 4, s40
    v_mov_b32 v{T0+1}, s42
    s_lshr_b32 s40, s2, 2
    s_and_b32 s40, s40, 7
    s_lshl_b32 s40, s40, 1
    s_add_u32 s40, s40, s39          ; hq
    s_lshr_b32 s42, s2, 5
    s_lshl_b32 s42, s42, 2
    s_and_b32 s43, s2, 3
    s_add_u32 s42, s42, s43          ; b*4+p
    s_lshl_b32 s43, s40, 5
    s_add_u32 s43, s43, s42
    s_lshl_b32 s43, s43, 4
    s_add_u32 s43, s43, {W_ML}
    s_lshl_b32 s40, s40, 1
    s_add_u32 s40, s40, s38
    s_lshl_b32 s40, s40, 5
    s_add_u32 s40, s40, s42
    s_lshl_b32 s40, s40, 10
    s_add_u32 s40, s40, {W_P}        ; P slot
    v_lshlrev_b32 v4, 4, v1
    s_waitcnt lgkmcnt(0)
    s_barrier""")
    for w in range(4): g(f"ds_read_b64 {r(8+2*w,2)}, v{T0+1} offset:{L_ML+16*w}")
    for w in range(4): g(f"ds_read_b64 {r(16+2*w,2)}, v{T0} offset:{L_O+2048*w}")
    g("s_waitcnt lgkmcnt(4)\nv_max3_f32 v28, v8, v10, v12\nv_max_f32 v28, v28, v14\nv_mov_b32 v25, s33\nv_mov_b32 v27, s33\nv_mov_b32 v29, s33\nv_mov_b32 v31, s33")
    for w in range(4): g(f"v_sub_f32 v{8+2*w}, v{8+2*w}, v28\nv_mul_f32 v{8+2*w}, s35, v{8+2*w}\nv_exp_f32 v{8+2*w}, v{8+2*w}")
    g("s_waitcnt lgkmcnt(0)\nv_mul_f32 v24, v8, v16\nv_mul_f32 v26, v8, v17\nv_mul_f32 v30, v8, v9")
    for w in range(1,4): g(f"v_fmac_f32 v24, v{8+2*w}, v{16+2*w}\nv_fmac_f32 v26, v{8+2*w}, v{17+2*w}\nv_fmac_f32 v30, v{8+2*w}, v{9+2*w}")
    g(f"""buffer_store_dwordx4 v[24:27], v4, s[12:15], s40 offen sc1
    s_cmp_lg_u32 s38, 0
    s_cbranch_scc1 L_noml
    s_mov_b64 exec, 1
    buffer_store_dwordx4 v[28:31], v4, s[12:15], s43 offen sc1
    s_mov_b64 exec, -1
    L_noml:""")
    g.ts(4)
    g(f"""s_cmp_ge_u32 s2, 224
    s_cbranch_scc1 L_send
    s_mul_i32 s38, s2, 9363
    s_lshr_b32 s38, s38, 16          ; ks = w/7
    s_lshr_b32 s39, s38, 1
    s_lshl_b32 s39, s39, 9
    s_lshl_b32 s40, s32, 7
    s_add_u32 s39, s39, s40
    s_add_u32 s39, s39, {W_ML}
    s_lshl_b32 s38, s38, 15
    s_lshl_b32 s40, s32, 13
    s_add_u32 s38, s38, s40
    s_add_u32 s38, s38, {W_P}
    s_add_u32 s40, s38, 4096
    v_and_b32 v5, 7, v1
    v_lshlrev_b32 v5, 4, v5""")
    l=spin_begin(g,"ml")
    g("buffer_load_dwordx4 v[8:11], v5, s[12:15], s39 offen sc1\ns_waitcnt vmcnt(0)")
    tagchk(g,[9,11],6); spin_end(g,l,o.get('sl_ml',2))
    g.ts(5)
    l=spin_begin(g,"pd")
    for n in range(8): g(f"buffer_load_dwordx4 {r(40+4*n,4)}, v4, s[12:15], s{38 if n<4 else 40} offen offset:{1024*(n&3)} sc1")
    g(f"""v_max_f32_dpp v12, v8, v8 quad_perm:[1,0,3,2] {DPPA}
    s_nop 1
    v_max_f32_dpp v12, v12, v12 quad_perm:[2,3,0,1] {DPPA}
    v_sub_f32 v12, v8, v12
    v_mul_f32 v12, s35, v12
    v_exp_f32 v12, v12
    s_nop 0
    v_mul_f32 v13, v12, v10
    s_nop 1
    v_add_f32_dpp v13, v13, v13 quad_perm:[1,0,3,2] {DPPA}
    s_nop 1
    v_add_f32_dpp v13, v13, v13 quad_perm:[2,3,0,1] {DPPA}
    v_rcp_f32 v13, v13
    s_nop 0
    v_mul_f32 v12, v12, v13
    s_nop 0""")
    for n in range(8): g(f"v_readlane_b32 s{48+n}, v12, {n}")
    g("s_waitcnt vmcnt(0)")
    tagchk(g,[41+2*k for k in range(16)],6); spin_end(g,l,0)
    for b in range(2):
        g(f"v_mul_f32 v{16+2*b}, s{48+4*b}, v{40+16*b}\nv_mul_f32 v{17+2*b}, s{48+4*b}, v{42+16*b}")
        for p in range(1,4): g(f"v_fmac_f32 v{16+2*b}, s{48+4*b+p}, v{40+16*b+4*p}\nv_fmac_f32 v{17+2*b}, s{48+4*b+p}, v{42+16*b+4*p}")
    g(f"""s_mul_i32 s38, s32, {2*AS}
    v_lshl_add_u32 v5, v1, 2, s38
    v_cvt_pk_bf16_f32 v16, v16, v17
    v_cvt_pk_bf16_f32 v18, v18, v19
    ds_write_b32 v5, v16 offset:{L_A}
    ds_write_b32 v5, v18 offset:{L_A+AS}
    s_waitcnt lgkmcnt(0)
    s_barrier
    L_send:""")
    g.ts(6); g.tsdump(1)
    g("s_endpgm")

XA, RW, BT, D0, BW = 8, 72, 104, 112, 136
import os
WF = os.environ.get("WF","nt")
def wq_setup(g, sr):
    srd(g, sr, 22, 448*8192)
    g(f"""s_lshr_b32 s73, s2, 5
    s_lshl_b32 s73, s73, 5
    s_and_b32 s38, s2, 7
    s_lshl_b32 s38, s38, 2
    s_add_u32 s73, s73, s38
    s_bfe_u32 s38, s2, 0x20003
    s_add_u32 s73, s73, s38
    s_lshl_b32 s38, s73, 5
    v_and_b32 v3, 1, v1
    v_lshl_add_u32 v3, v3, 4, s38
    v_lshrrev_b32 v2, 1, v1
    v_lshl_add_u32 v2, v2, 13, v3""")
def dma(g, sr, ns, lbase, off, base=None, fl=""):
    for n in ns:
        g(f"s_mov_b32 m0, {lbase+1024*n}")
        g(f"s_mov_b32 s40, {off(n)}" if base is None else f"s_add_u32 s40, s{base}, {off(n)}")
        g(f"buffer_load_dwordx4 v2, s[{sr}:{sr+3}], s40 offen {fl} lds")
def proj_mma(g, D, lbase):
    for s in range(14):
        for u in range(2): g(f"ds_read_b64_tr_b16 {r(BW+4*s+2*u,2)}, v64 offset:{lbase+1024*s+128*u}")
        if s==6 or s==13:
            g("s_waitcnt lgkmcnt(0)")
            for q in range(s-6,s+1): g(f"v_mfma_f32_16x16x32_bf16 {r(D,4)}, {r(XA+4*q,4)}, {r(BW+4*q,4)}, {'0' if q==0 else r(D,4)}")
def pairpack(g, D, o):
    g(f"""v_cndmask_b32 v{BT}, v{D}, v{D+2}, s[54:55]
    v_cndmask_b32 v{BT+1}, v{D+1}, v{D+3}, s[54:55]
    s_nop 1
    v_mov_b32_dpp v{BT+2}, v{BT} quad_perm:[1,0,3,2] {DPPA}
    v_mov_b32_dpp v{BT+3}, v{BT+1} quad_perm:[1,0,3,2] {DPPA}
    v_cndmask_b32 v{o+1}, v{BT+2}, v{BT+1}, s[56:57]
    v_cndmask_b32 v{o}, v{BT}, v{BT+3}, s[56:57]""")
def wslice_regs(g, lbase):
    for t in range(4):
        for c in range(4):
            for u in range(2): g(f"ds_read_b64_tr_b16 {r(BW+16*t+4*c+2*u,2)}, v65 offset:{lbase+4096*t+512*u+32*c}")
        g("s_waitcnt lgkmcnt(0)")
def wslice_mma_store(g, A, jobb):
    for t in range(4):
        for e in range(4): g(f"v_mfma_f32_16x16x32_bf16 {r(D0+4*e,4)}, {r(A+4*t,4)}, {r(BW+16*t+4*e,4)}, {'0' if t==0 else r(D0+4*e,4)}")
    for q in range(4): g(f"v_mov_b32 v{RW+4*q+1}, s33\nv_mov_b32 v{RW+4*q+3}, s33")
    for q in range(4):
        g(f"""v_cndmask_b32 v{RW+4*q}, v{D0+q}, v{D0+8+q}, s[54:55]
        v_cndmask_b32 v{RW+4*q+2}, v{D0+4+q}, v{D0+12+q}, s[54:55]
        s_add_u32 s40, s43, {q*28*jobb}
        buffer_store_dwordx4 {r(RW+4*q,4)}, v6, s[12:15], s40 offen sc1""")
def joboff(g, jobb):
    g(f"""v_and_b32 v6, 1, v5
    v_mul_u32_u24 v6, 112, v6
    v_and_b32 v7, 2, v5
    v_add_u32 v6, v6, v7
    v_lshrrev_b32 v7, 3, v4
    v_add_u32 v6, v6, v7
    v_mul_u32_u24 v6, {jobb}, v6
    v_and_b32 v7, 7, v4
    v_lshl_add_u32 v6, v7, 4, v6""")
def red8x2(g, v, t):
    g(f"s_nop 0\nv_add_f32_dpp v{v}, v{v}, v{v} row_ror:8 {DPPA}\nv_add_f32_dpp v{v+1}, v{v+1}, v{v+1} row_ror:8 {DPPA}")
    for sw in ("16","32"):
        g(f"""v_mov_b32 v{t}, v{v}
        v_mov_b32 v{t+1}, v{v+1}
        s_nop 0
        v_permlane{sw}_swap_b32 v{v}, v{t}
        v_permlane{sw}_swap_b32 v{v+1}, v{t+1}
        v_add_f32 v{v}, v{v}, v{t}
        v_add_f32 v{v+1}, v{v+1}, v{t+1}""")
def rbf2(g, v): g(f"v_cvt_pk_bf16_f32 v{v+1}, v{v}, v{v+1}\nv_lshlrev_b32 v{v}, 16, v{v+1}\nv_and_b32 v{v+1}, 0xffff0000, v{v+1}")
def div7(g, src): g(f"s_mul_i32 s39, s{src}, 9363\ns_lshr_b32 s39, s39, 16\ns_mul_i32 s40, s39, 7\ns_sub_u32 s38, s{src}, s40\ns_mul_i32 s42, s39, {128*896}\ns_lshl_b32 s40, s38, 7\ns_add_u32 s42, s42, s40")

def helper(g):
    o=g.o
    g("s_setprio 3")
    srd(g, 44, 16, 7168)
    X=PA
    g(f"""s_mul_i32 s38, s3, 1792
    v_lshl_add_u32 v{T0}, v1, 4, s38""")
    for k in range(8): g(f"v_mov_b32 v{X+k}, 0")
    g(f"""s_mov_b32 exec_hi, 0xffffff
    buffer_load_dwordx4 {r(X,4)}, v{T0}, s[44:47], 0 offen
    buffer_load_dwordx4 {r(X+4,4)}, v{T0}, s[44:47], 0 offen offset:896
    s_mov_b32 exec_hi, -1""")
    wq_setup(g, 4)
    g(f"s_lshl_b32 s38, s3, 10\ns_add_u32 m0, s38, {L_W0}\ns_lshl_b32 s38, s3, 18")
    for n in range(4):
        if n==3: g("s_cmp_ge_u32 s3, 2\ns_cbranch_scc1 L_wq3")
        g(f"buffer_load_dwordx4 v2, s[4:7], s38 offen {WF} lds\ns_add_u32 m0, m0, 4096\ns_add_u32 s38, s38, {128*8192}")
    g(f"""L_wq3:
    s_barrier
    s_mul_i32 s38, s3, {2*XNS}
    v_lshl_add_u32 v{T0+1}, v1, 4, s38""")
    g.ts(1)
    g(f"""v_and_b32 v4, 15, v1
    v_lshrrev_b32 v5, 4, v1
    s_mov_b32 s54, 0
    s_mov_b32 s55, -1
    s_mov_b32 s56, 0xaaaaaaaa
    s_mov_b32 s57, 0xaaaaaaaa
    v_lshlrev_b32 v64, 8, v5
    v_lshl_add_u32 v64, v4, 3, v64
    v_lshrrev_b32 v7, 2, v4
    v_lshlrev_b32 v65, 10, v5
    v_lshl_add_u32 v65, v7, 7, v65
    v_and_b32 v7, 3, v4
    v_lshl_add_u32 v65, v7, 3, v65
    v_and_b32 v7, 7, v4
    v_mul_u32_u24 v66, {XNS}, v7
    v_lshl_add_u32 v66, v5, 4, v66
    v_and_b32 v6, 1, v5
    v_lshlrev_b32 v6, 2, v6
    v_and_b32 v7, 2, v5
    v_add_u32 v6, v6, v7
    v_and_b32 v7, 1, v4
    v_add_u32 v67, v6, v7
    v_lshrrev_b32 v7, 1, v4
    v_lshlrev_b32 v68, 3, v7
    v_lshl_add_u32 v69, v67, 6, v68
    v_lshlrev_b32 v70, 4, v1
    s_lshl_b32 s38, s73, 9
    s_add_u32 s38, s38, {W_Q}
    s_bfe_u32 s39, s2, 0x30002
    s_lshl_b32 s39, s39, 14
    s_lshr_b32 s40, s2, 5
    s_lshl_b32 s40, s40, 6
    s_add_u32 s39, s39, s40
    s_add_u32 s39, s39, {W_Q}
    s_add_u32 s42, s39, 8192
    v_lshrrev_b32 v71, 2, v1
    v_lshlrev_b32 v71, 9, v71
    v_and_b32 v7, 3, v1
    v_lshl_add_u32 v71, v7, 4, v71
""")
    F=VQ; t=VQ+16
    def red64(v):
        for c in ("quad_perm:[1,0,3,2]","quad_perm:[2,3,0,1]","row_ror:4","row_ror:8"):
            g(f"s_nop 0\nv_add_f32_dpp v{v}, v{v}, v{v} {c} {DPPA}\nv_add_f32_dpp v{v+1}, v{v+1}, v{v+1} {c} {DPPA}")
        for sw in ("16","32"):
            g(f"""v_mov_b32 v{t+8}, v{v}
            v_mov_b32 v{t+9}, v{v+1}
            s_nop 0
            v_permlane{sw}_swap_b32 v{v}, v{t+8}
            v_permlane{sw}_swap_b32 v{v+1}, v{t+9}
            v_add_f32 v{v}, v{v}, v{t+8}
            v_add_f32 v{v+1}, v{v+1}, v{t+9}""")
        g(f"v_mul_f32 v{v}, {f2u(1/448):#x}, v{v}\nv_mul_f32 v{v+1}, {f2u(1/448):#x}, v{v+1}")
    def rb2(v): g(f"v_cvt_pk_bf16_f32 v{v+1}, v{v}, v{v+1}\nv_lshlrev_b32 v{v}, 16, v{v+1}\nv_and_b32 v{v+1}, 0xffff0000, v{v+1}")
    g(f"s_waitcnt vmcnt(3)")
    for n in range(8): g(f"v_lshlrev_b32 v{F+2*n}, 16, v{X+n}\nv_and_b32 v{F+2*n+1}, 0xffff0000, v{X+n}")
    g(f"v_add_f32 v{t}, v{F}, v{F+1}\nv_add_f32 v{t+1}, v{F+8}, v{F+9}")
    for k in range(2,8): g(f"v_add_f32 v{t}, v{t}, v{F+k}\nv_add_f32 v{t+1}, v{t+1}, v{F+8+k}")
    red64(t)
    g(f"v_mov_b32 v{t+2}, 0\nv_mov_b32 v{t+3}, 0\ns_mov_b32 exec_hi, 0xffffff")
    for k in range(16): g(f"v_sub_f32 v{t+4}, v{F+k}, v{t+(k>>3)}\nv_fmac_f32 v{t+2+(k>>3)}, v{t+4}, v{t+4}")
    g("s_mov_b32 exec_hi, -1\ns_nop 0")
    red64(t+2)
    rb2(t); rb2(t+2)
    g(f"v_add_f32 v{t+2}, {f2u(1e-5):#x}, v{t+2}\nv_add_f32 v{t+3}, {f2u(1e-5):#x}, v{t+3}"); rb2(t+2)
    g(f"v_sqrt_f32 v{t+2}, v{t+2}\nv_sqrt_f32 v{t+3}, v{t+3}\ns_nop 0"); rb2(t+2)
    g(f"v_rcp_f32 v{t+4}, v{t+2}\nv_rcp_f32 v{t+5}, v{t+3}")
    for k in range(16): g(f"v_sub_f32 v{F+k}, v{F+k}, v{t+(k>>3)}")
    for n in range(8): rb2(F+2*n)
    for k in range(16): g(f"v_mul_f32 v{t+6}, v{F+k}, v{t+4+(k>>3)}\nv_fma_f32 v{F+k}, -v{t+6}, v{t+2+(k>>3)}, v{F+k}\nv_fma_f32 v{F+k}, v{F+k}, v{t+4+(k>>3)}, v{t+6}")
    for n in range(8): g(f"v_cvt_pk_bf16_f32 v{X+n}, v{F+2*n}, v{F+2*n+1}")
    g(f"""s_mov_b32 exec_hi, 0xffffff
    ds_write_b128 v{T0+1}, {r(X,4)} offset:{L_XN}
    ds_write_b128 v{T0+1}, {r(X+4,4)} offset:{L_XN+XNS}
    s_mov_b32 exec_hi, -1
    s_waitcnt vmcnt(0)""")
    def bump(off): g(f"s_waitcnt vmcnt(0) lgkmcnt(0)\nv_mov_b32 v6, 0\nv_mov_b32 v7, 1\ns_mov_b64 exec, 1\nds_add_u32 v6, v7 offset:{L_CNT+off}\ns_mov_b64 exec, -1")
    def ldswait(off, cmp, val, sleep):
        l=g.lab("lw")
        g(f"v_mov_b32 v6, 0\n{l}:" + (f"\ns_sleep {sleep}" if sleep else "") + f"\nds_read_b32 v7, v6 offset:{L_CNT+off}\ns_waitcnt lgkmcnt(0)\nv_readfirstlane_b32 s40, v7\ns_cmp_{cmp}_u32 s40, {val}\ns_cbranch_scc1 {l}")
    bump(4)
    g("s_cmp_lg_u32 s3, 0\ns_cbranch_scc1 L_b1")
    ldswait(4, "lt", 4, 0)
    g.ts(2)
    for s in range(14): g(f"ds_read_b128 {r(XA+4*s,4)}, v66 offset:{L_XN+64*s}")
    proj_mma(g, D0, L_W0)
    g(f"v_mov_b32 v{RW+1}, s33\ns_nop 6")
    pairpack(g, D0, D0+4)
    g(f"v_cvt_pk_bf16_f32 v{RW}, v{D0+4}, v{D0+5}\nbuffer_store_dwordx2 {r(RW,2)}, v69, s[12:15], s38 offen sc1")
    g.ts(3)
    if o.get('pp'):
        def qp(k): g(f"buffer_load_dwordx4 {r(BW+8*k,4)}, v71, s[12:15], s39 offen sc1\nbuffer_load_dwordx4 {r(BW+8*k+4,4)}, v71, s[12:15], s42 offen sc1\ns_sleep {o['pp']}")
        NP=4
        for k in range(NP-1): qp(k)
        g(f"s_mov_b32 s41, {SPIN}\nL_qp:")
        for k in range(NP):
            qp((k+NP-1)%NP)
            g(f"s_waitcnt vmcnt({2*NP-2})")
            for x in range(8): g(f"v_mov_b32 v{RW+4+x}, v{BW+8*k+x}")
            tagchk(g,[RW+5,RW+7,RW+9,RW+11],BT); g("s_cbranch_vccz L_qok")
        g("s_sub_u32 s41, s41, 1\ns_cmp_lg_u32 s41, 0\ns_cbranch_scc1 L_qp\nL_qok:")
    else:
        l=spin_begin(g,"q")
        g(f"buffer_load_dwordx4 {r(RW+4,4)}, v71, s[12:15], s39 offen sc1\nbuffer_load_dwordx4 {r(RW+8,4)}, v71, s[12:15], s42 offen sc1\ns_waitcnt vmcnt(0)")
        tagchk(g,[RW+5,RW+7,RW+9,RW+11],BT); spin_end(g,l,0)
    g(f"""v_lshlrev_b32 v6, 3, v1
    v_add_u32 v6, {L_Q}, v6
    ds_write2_b32 v6, v{RW+4}, v{RW+6} offset0:0 offset1:1
    ds_write2_b32 v6, v{RW+8}, v{RW+10} offset0:128 offset1:129
    s_waitcnt lgkmcnt(0)
    L_b1:
    s_barrier""")
    g.ts(4)
    if o.get('noside'): g("s_branch L_hend")
    g("s_cmp_ge_u32 s2, 224\ns_cbranch_scc1 L_nowo")
    div7(g, 2)
    g(f"""v_lshrrev_b32 v2, 4, v1
    v_bfe_u32 v7, v1, 3, 1
    v_lshl_add_u32 v2, v2, 3, v7
    v_mul_u32_u24 v2, 896, v2
    v_and_b32 v7, 7, v1
    v_lshl_add_u32 v2, v7, 4, v2""")
    srd(g, 8, 24, 4096*896)
    g(f"s_mul_i32 s40, s3, {2*896}\ns_add_u32 s42, s42, s40\ns_lshl_b32 s40, s3, 12\ns_add_u32 m0, s40, {L_W1}\ns_nop 0")
    for n in range(4): g(f"buffer_load_dwordx4 v2, s[8:11], s42 offen nt lds\ns_add_u32 m0, m0, 1024\ns_add_u32 s42, s42, {32*896}")
    g("L_nowo:")
    if o.get('noj23'): g("s_mov_b32 s58, 99")
    elif o.get('claim'):
        g("s_cmp_lg_u32 s3, 0\ns_cbranch_scc1 L_getjob")
        srd(g, 60, 68, 256)
        ldswait(0, "lt", o['claim'], 16)
        g(f"""v_mov_b32 v7, 1
        s_mov_b64 exec, 1
        buffer_atomic_add v7, v6, s[60:63], 0 offen sc0 sc1
        s_waitcnt vmcnt(0)
        v_add_u32 v7, 1, v7
        ds_write_b32 v6, v7 offset:{L_CNT+8}
        s_mov_b64 exec, -1
        L_getjob:""")
        ldswait(8, "eq", 0, 16)
        g("s_sub_u32 s58, s40, 1")
    else:
        g("s_and_b32 s40, s2, 3\ns_bfe_u32 s58, s2, 0x20003\ns_cmp_lg_u32 s40, s58\ns_cselect_b32 s40, 99, 0\ns_lshr_b32 s58, s2, 2\ns_add_u32 s58, s58, s40")
    g(f"""s_cmp_ge_u32 s58, 42
    s_cbranch_scc1 L_nojob
    s_lshl_b32 s59, s58, 7
    s_add_u32 s59, s59, {W_F}
    s_cmp_ge_u32 s58, 28
    s_cbranch_scc1 L_j3
    v_lshrrev_b32 v2, 3, v1
    v_mul_u32_u24 v2, 3584, v2
    v_and_b32 v7, 7, v1
    v_lshl_add_u32 v2, v7, 4, v2
    s_lshl_b32 s42, s58, 7""")
    def join():
        bump(12)
        g("s_cmp_lg_u32 s3, 0\ns_cbranch_scc1 L_exit")
        ldswait(12, "lt", 4, 4)
    def wpass(D, first):
        g("s_waitcnt vmcnt(0)")
        for t in range(14):
            B=BW+16*(t&1)
            for c in range(4):
                for u in range(2): g(f"ds_read_b64_tr_b16 {r(B+4*c+2*u,2)}, v71 offset:{4096*t+512*u+32*c}")
            g("s_waitcnt lgkmcnt(0)")
            for c in range(4): g(f"v_mfma_f32_16x16x32_bf16 {r(D+4*c,4)}, {r(XA+4*t,4)}, {r(B+4*c,4)}, {'0' if (t==0 and first) else r(D+4*c,4)}")
    def dmaloop(sr, lb, n_out, step_out, step_in):
        l=g.lab("dma")
        g(f"s_lshl_b32 s40, s3, 11\ns_add_u32 m0, s40, {lb}\ns_mul_i32 s40, s3, {2*step_in}\ns_add_u32 s40, s40, s42\ns_mov_b32 s41, {n_out}\n{l}:")
        g(f"""buffer_load_dwordx4 v2, s[{sr}:{sr+3}], s40 offen nt lds
        s_add_u32 m0, m0, 1024
        s_add_u32 s40, s40, {step_in}
        buffer_load_dwordx4 v2, s[{sr}:{sr+3}], s40 offen nt lds
        s_add_u32 m0, m0, 7168
        s_add_u32 s40, s40, {step_out-step_in}
        s_sub_u32 s41, s41, 1
        s_cmp_lg_u32 s41, 0
        s_cbranch_scc1 {l}""")
    D1=BW+32
    srd(g, 4, 28, 448*3584); srd(g, 44, 30, 448*3584)
    dmaloop(4, L_W0, 7, 64*3584, 8*3584); dmaloop(44, L_W0+57344, 7, 64*3584, 8*3584); join()
    g(f"v_add_u32 v71, {L_W0}, v65"); wpass(D0, True)
    g(f"v_add_u32 v71, {L_W0+57344}, v65"); wpass(D1, True)
    g("s_nop 7")
    for c in range(4):
        pairpack(g, D0+4*c, RW+4); pairpack(g, D1+4*c, RW+6); rbf2(g, RW+4); rbf2(g, RW+6)
        g(f"v_mul_f32 v{RW+4}, v{RW+4}, v{RW+6}\nv_mul_f32 v{RW+5}, v{RW+5}, v{RW+7}\nv_cvt_pk_bf16_f32 v{RW+c}, v{RW+4}, v{RW+5}")
    g(f"""v_mul_u32_u24 v69, 3584, v67
    v_lshl_add_u32 v69, v68, 1, v69
    s_lshl_b32 s38, s58, 7
    s_add_u32 s38, s38, {W_H}
    buffer_store_dwordx4 {r(RW,4)}, v69, s[12:15], s38 offen sc1
    s_branch L_flag
    L_j3:
    s_sub_u32 s38, s58, 28
    s_cmp_ge_u32 s38, 7
    s_cselect_b32 s39, 1, 0          ; K half
    s_mul_i32 s40, s39, 7
    s_sub_u32 s40, s38, s40          ; ns
    s_lshl_b32 s40, s40, 7
    s_mul_i32 s42, s39, {896*896}
    s_add_u32 s42, s42, s40
    v_lshrrev_b32 v2, 4, v1
    v_bfe_u32 v7, v1, 3, 1
    v_lshl_add_u32 v2, v2, 4, v7
    v_mul_u32_u24 v2, 896, v2
    v_and_b32 v7, 7, v1
    v_lshl_add_u32 v2, v7, 4, v2
    v_mul_u32_u24 v69, 3584, v7
    v_lshl_add_u32 v69, v5, 4, v69
    v_add_u32 v71, {L_W0}, v65
    s_mul_i32 s43, s39, 1792
    s_add_u32 s52, s43, {W_F}
    s_add_u32 s43, s43, {W_H}
""")
    srd(g, 4, 64, 1792*896); dmaloop(4, L_W0, 14, 64*896, 2*896); join()
    g("v_min_u32 v6, 13, v1\nv_lshlrev_b32 v6, 7, v6")
    l=spin_begin(g,"hf")
    g(f"buffer_load_dword v{RW}, v6, s[12:15], s52 offen sc1\ns_waitcnt vmcnt(0)")
    tagchk(g,[RW],BT); spin_end(g,l,64)
    for t in range(14): g(f"buffer_load_dwordx4 {r(XA+4*t,4)}, v69, s[12:15], s43 offen offset:{64*t} sc1")
    wpass(D0, True)
    g(f"v_add_u32 v71, {L_W0+57344}, v65\ns_nop 7")
    for t in range(14): g(f"buffer_load_dwordx4 {r(XA+4*t,4)}, v69, s[12:15], s43 offen offset:{896+64*t} sc1")
    wpass(D0, False)
    g(f"""v_and_b32 v6, 1, v5
    v_lshlrev_b32 v6, 2, v6
    v_and_b32 v7, 2, v5
    v_add_u32 v6, v6, v7
    v_lshlrev_b32 v6, 8, v6
    v_lshl_add_u32 v6, v4, 4, v6
    s_lshl_b32 s38, s38, 11
    s_add_u32 s38, s38, {W_Y}""")
    for q in range(2):
        for c in range(4): g(f"v_cndmask_b32 v{RW+4*q+c}, v{D0+4*c+q}, v{D0+4*c+2+q}, s[54:55]")
        g(f"buffer_store_dwordx4 {r(RW+4*q,4)}, v6, s[12:15], s38 offen offset:{256*q} sc1")
    g(f"""L_flag:
    s_waitcnt vmcnt(0)
    v_mov_b32 v6, s33
    s_mov_b64 exec, 1
    buffer_store_dword v6, v70, s[12:15], s59 offen sc1
    s_mov_b64 exec, -1
    s_branch L_noj3
    L_nojob:""")
    join()
    g(f"""L_noj3:
    s_cmp_ge_u32 s2, 224
    s_cbranch_scc1 L_hend""")
    div7(g, 2)
    g("v_and_b32 v7, 7, v1")
    g(f"""s_lshl_b32 s43, s38, 14
    s_lshl_b32 s40, s39, 7
    s_add_u32 s43, s43, s40
    s_add_u32 s43, s43, {W_S}
    s_lshr_b32 s38, s2, 1
    s_lshl_b32 s38, s38, 6
    s_and_b32 s40, s2, 1
    s_lshl_b32 s40, s40, 4
    s_add_u32 s38, s38, s40
    v_lshl_add_u32 v36, v7, 1, s38""")
    srd(g, 44, 16, 7168); srd(g, 48, 66, 7168)
    g(f"buffer_load_ushort v34, v36, s[44:47], 0 offen\nbuffer_load_ushort v35, v36, s[44:47], 0 offen offset:32\ns_waitcnt vmcnt(0)")
    wslice_regs(g, L_W1); joboff(g, 4096)
    g(f"""v_lshlrev_b32 v34, 16, v34
    v_lshlrev_b32 v35, 16, v35
    v_mul_u32_u24 v38, {AS}, v7
    v_lshl_add_u32 v38, v5, 4, v38
    s_mul_i32 s38, s2, 2341
    s_lshr_b32 s38, s38, 16          ; b = w/28
    s_mul_i32 s39, s38, 28
    s_sub_u32 s39, s2, s39
    s_lshr_b32 s40, s39, 2           ; ns
    s_lshl_b32 s52, s40, 7
    s_add_u32 s52, s52, {W_F+28*128}
    s_lshl_b32 s40, s40, 11
    s_lshl_b32 s38, s38, 8
    s_add_u32 s38, s38, s40
    s_and_b32 s40, s39, 1
    s_lshl_b32 s40, s40, 7
    s_add_u32 s38, s38, s40
    s_and_b32 s40, s39, 2
    s_lshl_b32 s40, s40, 2
    s_add_u32 s38, s38, s40
    s_add_u32 s38, s38, {W_Y}
    v_bfe_u32 v39, v1, 3, 1
    v_mul_u32_u24 v37, 896, v39
    v_mul_u32_u24 v39, 14336, v39
    v_lshl_add_u32 v39, v7, 4, v39""")
    g.ts(5)
    if o.get('notail'): g("s_branch L_hend")
    g("s_barrier")
    l=spin_begin(g,"y")
    g(f"buffer_load_dword v{RW}, v37, s[12:15], s52 offen sc1\ns_waitcnt vmcnt(0)")
    tagchk(g,[RW],BT)
    if o.get('noj23'): g("s_mov_b64 vcc, 0")
    spin_end(g,l,8)
    g(f"""buffer_load_dwordx2 v[32:33], v39, s[12:15], s38 offen sc1
    s_waitcnt vmcnt(0)
    v_add_f32_dpp v32, v32, v32 row_ror:8 {DPPA}
    v_add_f32_dpp v33, v33, v33 row_ror:8 {DPPA}""")
    rbf2(g,32)
    for v in (32,33):
        g(f"""v_mul_f32 v{BT}, {f2u(-1.4426950408889634):#x}, v{v}
        v_exp_f32 v{BT}, v{BT}
        s_nop 0
        v_add_f32 v{BT}, 1.0, v{BT}
        v_rcp_f32 v{BT}, v{BT}
        s_nop 0
        v_mul_f32 v{v}, v{v}, v{BT}""")
    rbf2(g,32)
    g(f"s_lshl_b32 s38, s2, 12\ns_add_u32 s38, s38, {W_S}\ns_barrier")
    for t in range(4): g(f"ds_read_b128 {r(XA+4*t,4)}, v38 offset:{L_A+64*t}")
    g("s_waitcnt lgkmcnt(0)")
    wslice_mma_store(g, XA, 4096)
    g.ts(6)
    R2=RW+16
    l=spin_begin(g,"s")
    for n in range(4): g(f"buffer_load_dwordx4 {r(R2+4*n,4)}, v70, s[12:15], s38 offen offset:{1024*n} sc1")
    g("s_waitcnt vmcnt(0)")
    tagchk(g,[R2+1+2*k for k in range(8)],BT); spin_end(g,l,o.get('sl_s',1))
    g(f"""v_add_f32 v{R2}, v{R2}, v{R2+4}
    v_add_f32 v{R2+2}, v{R2+2}, v{R2+6}
    v_add_f32 v{R2+8}, v{R2+8}, v{R2+12}
    v_add_f32 v{R2+10}, v{R2+10}, v{R2+14}
    v_add_f32 v30, v{R2}, v{R2+8}
    v_add_f32 v31, v{R2+2}, v{R2+10}""")
    red8x2(g,30,BT); rbf2(g,30)
    g("v_mul_f32 v30, v30, v32\nv_mul_f32 v31, v31, v33"); rbf2(g,30)
    g(f"""v_add_f32 v30, v30, v34
    v_add_f32 v31, v31, v35
    v_cvt_pk_bf16_f32 v31, v30, v31
    s_mov_b64 exec, 0xff
    buffer_store_short v31, v36, s[48:51], 0 offen
    buffer_store_short_d16_hi v31, v36, s[48:51], 0 offen offset:32
    s_cmp_lg_u32 s2, 0
    s_cbranch_scc1 L_hend
    s_mov_b64 exec, 1
    v_mov_b32 v30, s33
    buffer_store_dword v30, v70, s[12:15], 0 offen sc1
    L_hend:""")
    g.ts(7); g.tsdump()
    g("s_endpgm")

def build(opt):
    g=G(opt)
    hdr=open("cdna_kernels/"+NAME+".s.ref").read().split("; Override launch")[0]
    g.L.append(hdr+f"; @launch grid=(256,1,1) block=(512,1,1) lds={LDS}")
    g.L.append(f'.amdgcn_target "amdgcn-amd-amdhsa--gfx950"\n.text\n.globl {NAME}_kernel\n.p2align 8\n.type {NAME}_kernel,@function\n{NAME}_kernel:')
    g.ts(0)
    g(f"""s_cmp_ge_u32 s2, 256
    s_cbranch_scc1 L_exit
    s_load_dwordx16 s[16:31], s[0:1], 0
    s_load_dwordx8 s[64:71], s[0:1], 64
    v_lshrrev_b32 v2, 6, v0
    v_and_b32 v1, 63, v0
    v_mov_b32 v6, 0
    v_mov_b32 v8, 0
    v_mov_b32 v9, 0
    v_mov_b32 v10, 0
    v_mov_b32 v11, 0
    ds_write_b128 v6, v[8:11] offset:{L_CNT}
    v_readfirstlane_b32 s3, v2
    s_waitcnt lgkmcnt(0)
    s_load_dword s72, s[70:71], 0""")
    srd(g, 12, 70, W_END)
    g("s_cmp_lt_u32 s3, 4\ns_cbranch_scc1 L_helper")
    mark=len(g.L); stream(g)
    g("L_helper:"); mark2=len(g.L); helper(g)
    for m in (mark2, mark):
        k=next(i for i in range(m,len(g.L)) if g.L[i].strip()=="s_waitcnt lgkmcnt(0)")
        g.L.insert(k+1,"  s_add_u32 s33, s72, 0x9e3779b9")
    g("L_exit:\ns_endpgm")
    g.L.append(f""".section .rodata,"a"
.p2align 6
.amdhsa_kernel {NAME}_kernel
  .amdhsa_next_free_vgpr 224
  .amdhsa_next_free_sgpr 102
  .amdhsa_accum_offset 224
  .amdhsa_group_segment_fixed_size 0
  .amdhsa_kernarg_size 96
  .amdhsa_user_sgpr_count 2
  .amdhsa_user_sgpr_kernarg_segment_ptr 1
  .amdhsa_system_sgpr_workgroup_id_x 1
.end_amdhsa_kernel""")
    return "\n".join(g.L)+"\n"

if __name__=="__main__":
    opt=eval(sys.argv[2]) if len(sys.argv)>2 else {}
    open(sys.argv[1],"w").write(build(opt))
```

```python
import sys, struct
NAME = "recurrent_scan__gqa_block_cached__glu_gated_bilinear__decode"
def f2u(x): return struct.unpack('<I', struct.pack('<f', x))[0]
CSC = f2u(0.0625*1.4426950408889634)
W_Q, W_H, W_Y, W_S, W_P, W_ML, W_TS, W_END = 0x1000, 0x21000, 0x30000, 0xA0000, 0x180000, 0x280000, 0x290000, 0x300000
L_XN, XNS = 0, 912
L_Q = 7424
L_O = 8448
L_ML = 16640
L_A, AS = 16704, 272
L_CNT = 18944
L_W0, L_W1 = 35840, 19456
LDS = 35840+114688
W_F = 0x28000
DPPA = "row_mask:0xf bank_mask:0xf"
SPIN = 20000

class G:
    def __init__(s, opt): s.L=[]; s.o=opt; s.n=0
    def __call__(s, t):
        for ln in t.split("\n"):
            ln=ln.strip()
            if ln: s.L.append(ln if ln.endswith(":") else "  "+ln)
    def lab(s, p): s.n+=1; return f"L_{p}_{s.n}"
    def ts(s, k):
        if s.o.get('ts'): s(f"s_memrealtime s[{80+2*k}:{81+2*k}]")
    def tsdump(s, role=0):
        if not s.o.get('ts'): return
        if s.o.get('ts')==3:
            srd(s, 60, 68, 256)
            s(f"s_waitcnt lgkmcnt(0)\ns_mov_b64 exec, 1\nv_mov_b32 v7, 0\ns_cmp_lg_u32 s2, 5\ns_cbranch_scc1 L_exit\ns_cmp_lg_u32 s3, {4*role}\ns_cbranch_scc1 L_exit")
            for k in range(1,8): s(f"s_sub_u32 s40, s{80+2*k}, s80\nv_mov_b32 v{8+k}, s40\nbuffer_store_dword v{8+k}, v7, s[60:63], 0 offen offset:{4*k+32*role}")
            return
        if s.o.get('ts')==2:
            srd(s, 60, 68, 256)
            s("s_waitcnt lgkmcnt(0)\ns_mov_b64 exec, 1\nv_mov_b32 v7, 0\ns_cmp_ge_u32 s2, 224\ns_cbranch_scc1 L_exit")
            items=[(1,0,1),(2,2,0),(3,7,1),(4,7,0),(5,3,1),(6,3,0),(7,0,0)] if role else [(8,2,0),(9,3,0),(10,5,0),(11,6,0),(12,7,0)]
            for w,k,inv in items:
                s(f"v_{'not' if inv else 'mov'}_b32 v{8+w}, s{80+2*k}\nbuffer_atomic_umax v{8+w}, v7, s[60:63], 0 offen offset:{4*w} sc1")
            return
        s("s_waitcnt lgkmcnt(0)\ns_mov_b64 exec, 1")
        for k in range(8): s(f"v_mov_b32 v{8+k}, s{80+2*k}")
        s(f"s_mul_i32 s40, s2, 8\ns_add_u32 s40, s40, s3\ns_lshl_b32 s40, s40, 5\ns_add_u32 s40, s40, {W_TS}\nv_mov_b32 v7, 0")
        s("buffer_store_dwordx4 v[8:11], v7, s[12:15], s40 offen\nbuffer_store_dwordx4 v[12:15], v7, s[12:15], s40 offen offset:16")

def r(b, n): return f"v[{b}:{b+n-1}]"

def red_g(g, op, v, t):
    g(f"""v_mov_b32 v{t}, v{v}
    s_nop 1
    v_permlane32_swap_b32 v{v}, v{t}
    s_nop 0
    {op} v{v}, v{v}, v{t}
    v_mov_b32 v{t}, v{v}
    s_nop 1
    v_permlane16_swap_b32 v{v}, v{t}
    s_nop 0
    {op} v{v}, v{v}, v{t}""")

def spin_begin(g, p):
    l=g.lab(p); g(f"s_mov_b32 s41, {SPIN}\n{l}:"); return l
def spin_end(g, l, sleep):
    d=g.lab("dn")
    g(f"""s_cbranch_vccz {d}
    s_sub_u32 s41, s41, 1
    s_cmp_eq_u32 s41, 0
    s_cbranch_scc1 {d}
    s_sleep {sleep}
    s_branch {l}
    {d}:""")
def tagchk(g, regs, t):
    g(f"v_xor_b32 v{t}, s33, v{regs[0]}")
    for x in regs[1:]: g(f"v_xor_b32 v{t+1}, s33, v{x}\nv_or_b32 v{t}, v{t}, v{t+1}")
    g(f"v_cmp_ne_u32 vcc, 0, v{t}\ns_nop 4")

def srd(g, d, p, size): g(f"s_mov_b32 s{d}, s{p}\ns_mov_b32 s{d+1}, s{p+1}\ns_mov_b32 s{d+2}, {size}\ns_mov_b32 s{d+3}, 0x20000")

VK, VV, VQ, KB, S0, ACC, VM, VL, T0, PA, PB = 2, 3, 8, 40, 168, 172, 180, 181, 182, 192, 208
VKA, VVA, VONE, VIDX, VQ4, VK4 = 190, 191, 6, 7, 216, 189
VSC, VKB, VV1, VKM, VKM1, VQM = 188, 191, 208, 209, 210, 224
UNIT={'c':[[0,1,2,3],[4,5,6,7]], 'm':[[0,1,4,6],[2,3,5,7]], 'h':[[0,2,4,6],[1,3,5,7]]}
def unit(g, dst, src, tab):
    g(f"v_lshlrev_b32 v{dst}, 2, v{src}\ns_mov_b32 s38, {sum(t<<(4*k) for k,t in enumerate(tab)):#x}\nv_lshrrev_b32 v{dst}, v{dst}, s38\nv_and_b32 v{dst}, 7, v{dst}\nv_lshlrev_b32 v{dst}, 6, v{dst}")
def buf(s): return KB+32*s
def ld(g, form, s, lds=False):
    two = form in 'vm'
    if two: g(f"v_add_u32 v{VKB}, s34, v{dict(m=VKM1,v=VV1)[form]}")
    g(f"v_add_u32 v{VKA}, s34, v{dict(r=VK,q=VK4,v=VV,m=VKM)[form]}\ns_add_u32 s34, s34, 0x8000")
    st=64 if form=='r' else 256; sr="s[8:11]" if form=='v' else "s[4:7]"; fl=g.o.get('fv' if form=='v' else 'fk','nt')
    for j in range(8):
        if lds: g(f"buffer_load_dwordx4 v{VKA}, {sr}, 0 offen offset:{st*j} {fl} lds\ns_add_u32 m0, m0, {1024-st if j<7 else 1024+7*st}\ns_nop 0")
        elif two: g(f"buffer_load_dwordx4 {r(buf(s)+4*j,4)}, v{VKB if j&1 else VKA}, {sr}, 0 offen offset:{512*(j>>1)} {fl}")
        else: g(f"buffer_load_dwordx4 {r(buf(s)+4*j,4)}, v{VKA}, {sr}, 0 offen offset:{st*j} {fl}")
def tick(g): g(f"s_mov_b64 exec, 1\nds_add_u32 v4, v{VONE} offset:{L_CNT}\ns_mov_b64 exec, -1")
def unpack(g, t): g(f"v_lshlrev_b32 v{S0}, 16, v{t}\nv_and_b32 v{S0+1}, 0xffff0000, v{t}\nv_lshlrev_b32 v{S0+2}, 16, v{t+1}\nv_and_b32 v{S0+3}, 0xffff0000, v{t+1}")
def kstep(g, s, form, wait, nxt):
    tick(g)
    g(f"s_waitcnt vmcnt({wait})")
    if form!='r':
        for hf in range(2):
            for tt in range(4): g(f"v_mfma_f32_16x16x32_bf16 {r(PA+4*tt,4)}, {r(buf(s)+4*(2*tt+hf),4)}, {r((VQ4 if form=='q' else VQM)+4*hf,4)}, {'0' if hf==0 else r(PA+4*tt,4)}")
    else:
        for j in range(8): g(f"v_mfma_f32_16x16x32_bf16 {r(S0,4)}, {r(buf(s)+4*j,4)}, {r(VQ+4*j,4)}, {'0' if j==0 else r(S0,4)}")
    if nxt: ld(g, nxt, s)
    else: g("s_nop 7")
    if form!='r':
        for tt in range(4): g(f"v_cndmask_b32 v{PA+4*tt}, v{PA+4*tt}, v{PA+4*tt+1}, s[44:45]\nv_cndmask_b32 v{PA+4*tt+2}, v{PA+4*tt+2}, v{PA+4*tt+3}, s[44:45]")
        for tt in range(4): g(f"v_cndmask_b32 v{S0+tt}, v{PA+4*tt}, v{PA+4*tt+2}, s[46:47]")
        for c in (4,8):
            for tt in range(4): g(f"v_add_f32_dpp v{S0+tt}, v{S0+tt}, v{S0+tt} row_ror:{c} {DPPA}")
    t=T0
    g(f"v_cvt_pk_bf16_f32 v{t}, v{S0}, v{S0+1}\nv_cvt_pk_bf16_f32 v{t+1}, v{S0+2}, v{S0+3}\nds_write_b64 v{VSC}, {r(t,2)} offset:{L_O}")
    unpack(g, t)
    g(f"v_add_u32 v{VSC}, 64, v{VSC}\nv_max3_f32 v{VM}, v{S0}, v{S0+1}, v{VM}\nv_max3_f32 v{VM}, v{S0+2}, v{S0+3}, v{VM}")
def vstep(g, s, wait, nxt):
    t=T0
    tick(g)
    g(f"ds_read_b64 {r(t,2)}, v{VSC} offset:{L_O}\nv_add_u32 v{VSC}, 64, v{VSC}\ns_waitcnt lgkmcnt(0)")
    unpack(g, t)
    for k in range(4): g(f"v_fma_f32 v{S0+k}, v{S0+k}, s35, -v{t+4}")
    for k in range(4): g(f"v_exp_f32 v{S0+k}, v{S0+k}")
    g(f"""v_add_f32 v{VL}, v{VL}, v{S0}
    v_cvt_pk_bf16_f32 v{t+2}, v{S0}, v{S0+1}
    v_cvt_pk_bf16_f32 v{t+3}, v{S0+2}, v{S0+3}
    v_add_f32 v{S0+1}, v{S0+1}, v{S0+2}
    v_add_f32 v{VL}, v{VL}, v{S0+3}
    v_add_f32 v{VL}, v{VL}, v{S0+1}""")
    for e in range(8): g(f"v_cndmask_b32 v{PA+2*e}, 0, v{t+2}, s[{48+2*e}:{49+2*e}]\nv_cndmask_b32 v{PA+2*e+1}, 0, v{t+3}, s[{48+2*e}:{49+2*e}]")
    g(f"s_waitcnt vmcnt({wait})")
    V=buf(s); TB=buf(2)
    for n in range(16):
        a,e=n>>3,n&7; sel=36+(e&1); d=4*a+(e>>1)
        g(f"v_perm_b32 v{TB+2*n}, v{V+8+d}, v{V+d}, s{sel}\nv_perm_b32 v{TB+2*n+1}, v{V+24+d}, v{V+16+d}, s{sel}")
    if nxt: ld(g, 'v', s)
    for n in range(16):
        a,e=n&1,n>>1
        g(f"v_mfma_f32_16x16x16_bf16 {r(ACC+4*a,4)}, {r(PA+2*e,2)}, {r(TB+2*(8*a+e),2)}, {r(ACC+4*a,4)}")

def stream(g):
    o=g.o
    g(f"""s_sub_u32 s32, s3, 4
    s_lshl_b32 s4, s2, 20
    s_add_u32 s8, s20, s4
    s_addc_u32 s9, s21, 0
    s_add_u32 s4, s18, s4
    s_addc_u32 s5, s19, 0
    s_mov_b32 s6, 0x100000
    s_mov_b32 s7, 0x20000
    s_mov_b32 s10, 0x100000
    s_mov_b32 s11, 0x20000""")
    g(f"""v_and_b32 v4, 15, v1
    v_lshrrev_b32 v5, 4, v1
    v_lshlrev_b32 v{VK}, 9, v4
    v_lshl_add_u32 v{VK}, v5, 4, v{VK}
    v_lshlrev_b32 v{VV}, 11, v5
    v_lshl_add_u32 v{VV}, v4, 4, v{VV}
    s_lshl_b32 s34, s32, 13""")
    P0,P1=o.get('p0','qqqqqq'),o.get('p1','mm')
    g(f"v_lshrrev_b32 v6, 2, v4\nv_lshlrev_b32 v{VK4}, 11, v6\nv_lshl_add_u32 v{VK4}, v5, 6, v{VK4}\nv_and_b32 v6, 3, v4\nv_lshl_add_u32 v{VK4}, v6, 4, v{VK4}")
    g("s_barrier")
    for k in range(4): ld(g, P0[k], k)
    g(f"s_lshl_b32 s38, s32, 14\ns_add_u32 s38, s38, {L_W0+16384}\ns_mov_b32 m0, s38\nv_lshl_add_u32 v{T0+5}, v1, 4, s38")
    ld(g, P0[4], 0, True); ld(g, P0[5], 0, True)
    g.ts(1)
    g(f"s_mov_b32 s35, {CSC}\ns_mov_b32 s36, 0x05040100\ns_mov_b32 s37, 0x07060302")
    for e in range(8):
        m=0
        for i in range(16):
            if (i&1)+2*(i>>2)==e: m|=1<<i
        m|=m<<16
        g(f"s_mov_b32 s{48+2*e}, {m:#x}\ns_mov_b32 s{49+2*e}, {m:#x}")
    UV, UK = UNIT[o.get('uv','m')], UNIT[o.get('uk','m')]
    assert 'm' not in P0
    g(f"v_lshrrev_b32 v7, 2, v4\nv_and_b32 v6, 3, v4\nv_lshlrev_b32 v6, 4, v6")
    for a in range(2):
        d=(VV,VV1)[a]; unit(g, d, 7, UV[a]); g(f"v_lshl_add_u32 v{d}, v5, 11, v{d}\nv_add_u32 v{d}, v{d}, v6")
        d=(VKM,VKM1)[a]; unit(g, d, 5, UK[a])
        g(f"v_bfe_u32 v{211+a}, v1, 1, 1\nv_lshl_add_u32 v{211+a}, v{211+a}, 9, v{d}\nv_lshl_add_u32 v{211+a}, v7, 4, v{211+a}")
        g(f"v_lshl_add_u32 v{d}, v7, 11, v{d}\nv_add_u32 v{d}, v{d}, v6")
    g(f"v_mov_b32 v{VONE}, 1")
    for k in range(8): g(f"v_mov_b32 v{ACC+k}, 0")
    g(f"v_mov_b32 v{VM}, 0xff800000\nv_mov_b32 v{VL}, 0")
    g(f"""v_bfe_u32 v{T0}, v1, 1, 1
    v_lshlrev_b32 v{T0}, 9, v{T0}
    v_lshl_add_u32 v{T0+2}, v5, 6, v{T0}
    v_lshl_add_u32 v{T0}, v5, 4, v{T0}
    v_lshrrev_b32 v7, 2, v4
    v_lshl_add_u32 v{T0+2}, v7, 4, v{T0+2}
    s_mov_b32 s44, 0xf0f0f0f0
    s_mov_b32 s45, s44
    s_mov_b32 s46, 0xff00ff00
    s_mov_b32 s47, s46
    s_barrier""")
    g.ts(2)
    for j in range(2): g(f"ds_read_b128 {r(VQ4+4*j,4)}, v{T0+2} offset:{L_Q+256*j}\nds_read_b128 {r(VQM+4*j,4)}, v{211+j} offset:{L_Q}")
    for j in range(8): g(f"ds_read_b128 {r(VQ+4*j,4)}, v{T0} offset:{L_Q+64*j}")
    g("s_waitcnt lgkmcnt(0)")
    def scaddr(): g(f"s_lshl_b32 s38, s32, 11\nv_and_b32 v{VSC}, 2, v1\nv_lshl_add_u32 v{VSC}, v{VSC}, 2, s38\nv_lshl_add_u32 v{VSC}, v5, 4, v{VSC}")
    def loop(n, body):
        l=g.lab("run"); g(f"s_mov_b32 s38, {n}\n{l}:"); body(); g(f"s_sub_u32 s38, s38, 1\ns_cmp_lg_u32 s38, 0\ns_cbranch_scc1 {l}")
    scaddr()
    kstep(g,0,P0[0],40,P1[0]); kstep(g,1,P0[1],40,P1[1]); kstep(g,2,P0[2],40,None); kstep(g,3,P0[3],32,None)
    g("s_waitcnt vmcnt(16)")
    for j in range(16): g(f"ds_read_b128 {r(buf(2)+4*j,4)}, v{T0+5} offset:{1024*j}")
    g("s_waitcnt lgkmcnt(0)")
    kstep(g,2,P0[4],16,None); kstep(g,3,P0[5],16,None)
    loop(12, lambda: (kstep(g,0,P1[0],8,P1[0]), kstep(g,1,P1[1],8,P1[1])))
    g("s_lshl_b32 s34, s32, 13")
    kstep(g,0,P1[0],8,'v'); kstep(g,1,P1[1],8,'v')
    red_g(g, "v_max_f32", VM, T0)
    g(f"v_mul_f32 v{T0+4}, s35, v{VM}")
    scaddr()
    g.ts(7)
    loop(15, lambda: (vstep(g,0,8,True), vstep(g,1,8,True)))
    vstep(g,0,8,False); vstep(g,1,0,False)
    g.ts(3)
    if o.get('noside') or o.get('notail'): g("s_branch L_send")
    def rnd(skip):
        for n in range(8):
            k=g.lab("sk")
            if skip: g(f"s_bitcmp0_b32 s42, {n}\ns_cbranch_scc1 {k}")
            g(f"buffer_load_dwordx4 {r(40+4*n,4)}, v4, s[12:15], s{74 if n<4 else 76} offen offset:{1024*(n&3)} sc1\n{k}:")
        g("buffer_load_dwordx4 v[32:35], v36, s[12:15], s75 offen sc1")
    g("v_lshlrev_b32 v4, 4, v1")
    g(f"""s_cmp_ge_u32 s2, 224
    s_cbranch_scc1 L_nor0
    s_mul_i32 s74, s2, 9363
    s_lshr_b32 s74, s74, 16          ; ks = w/7
    s_lshr_b32 s75, s74, 1
    s_lshl_b32 s75, s75, 9
    s_lshl_b32 s76, s32, 7
    s_add_u32 s75, s75, s76
    s_add_u32 s75, s75, {W_ML}
    s_lshl_b32 s74, s74, 15
    s_lshl_b32 s76, s32, 13
    s_add_u32 s74, s74, s76
    s_add_u32 s74, s74, {W_P}
    s_add_u32 s76, s74, 4096
    v_and_b32 v36, 7, v1
    v_lshlrev_b32 v36, 4, v36""")
    g("buffer_load_dwordx4 v[32:35], v36, s[12:15], s75 offen sc1")
    g("L_nor0:")
    red_g(g, "v_add_f32", VL, T0)
    g(f"""s_lshl_b32 s38, s32, 11
    v_lshl_add_u32 v{T0}, v1, 4, s38
    v_and_b32 v{T0+1}, 2, v1
    v_lshlrev_b32 v{T0+1}, 2, v{T0+1}
    v_lshl_add_u32 v{T0+1}, s32, 4, v{T0+1}
    ds_write_b128 v{T0}, {r(ACC,4)} offset:{L_O}
    ds_write_b128 v{T0}, {r(ACC+4,4)} offset:{L_O+1024}
    ds_write_b64 v{T0+1}, {r(VM,2)} offset:{L_ML}
    s_lshr_b32 s38, s32, 1
    s_and_b32 s39, s32, 1
    s_lshl_b32 s40, s38, 10
    s_lshl_b32 s42, s39, 3
    s_add_u32 s40, s40, s42
    v_lshl_add_u32 v{T0}, v1, 4, s40
    v_mov_b32 v{T0+1}, s42
    s_lshr_b32 s40, s2, 2
    s_and_b32 s40, s40, 7
    s_lshl_b32 s40, s40, 1
    s_add_u32 s40, s40, s39          ; hq
    s_lshr_b32 s42, s2, 5
    s_lshl_b32 s42, s42, 2
    s_and_b32 s43, s2, 3
    s_add_u32 s42, s42, s43          ; b*4+p
    s_lshl_b32 s43, s40, 5
    s_add_u32 s43, s43, s42
    s_lshl_b32 s43, s43, 4
    s_add_u32 s43, s43, {W_ML}
    s_lshl_b32 s40, s40, 1
    s_add_u32 s40, s40, s38
    s_lshl_b32 s40, s40, 5
    s_add_u32 s40, s40, s42
    s_lshl_b32 s40, s40, 10
    s_add_u32 s40, s40, {W_P}        ; P slot
    v_lshlrev_b32 v4, 4, v1
    s_waitcnt lgkmcnt(0)
    s_barrier""")
    for w in range(4): g(f"ds_read_b64 {r(8+2*w,2)}, v{T0+1} offset:{L_ML+16*w}")
    for w in range(4): g(f"ds_read_b64 {r(16+2*w,2)}, v{T0} offset:{L_O+2048*w}")
    g("s_waitcnt lgkmcnt(4)\nv_max3_f32 v28, v8, v10, v12\nv_max_f32 v28, v28, v14\nv_mov_b32 v25, s33\nv_mov_b32 v27, s33\nv_mov_b32 v29, s33\nv_mov_b32 v31, s33")
    for w in range(4): g(f"v_sub_f32 v{8+2*w}, v{8+2*w}, v28\nv_mul_f32 v{8+2*w}, s35, v{8+2*w}\nv_exp_f32 v{8+2*w}, v{8+2*w}")
    g("s_waitcnt lgkmcnt(0)\nv_mul_f32 v24, v8, v16\nv_mul_f32 v26, v8, v17\nv_mul_f32 v30, v8, v9")
    for w in range(1,4): g(f"v_fmac_f32 v24, v{8+2*w}, v{16+2*w}\nv_fmac_f32 v26, v{8+2*w}, v{17+2*w}\nv_fmac_f32 v30, v{8+2*w}, v{9+2*w}")
    g(f"""buffer_store_dwordx4 v[24:27], v4, s[12:15], s40 offen {o.get('pf','sc1')}
    s_cmp_lg_u32 s38, 0
    s_cbranch_scc1 L_noml
    s_mov_b64 exec, 1
    buffer_store_dwordx4 v[28:31], v4, s[12:15], s43 offen sc1
    s_mov_b64 exec, -1
    s_waitcnt vmcnt(2)
    s_branch L_ml
    L_noml:
    s_waitcnt vmcnt(1)
    L_ml:""")
    g.ts(4)
    g("s_cmp_ge_u32 s2, 224\ns_cbranch_scc1 L_send")
    g(f"s_mov_b32 s42, 0xff\ns_mov_b32 s41, {SPIN}\ns_branch L_hint\nL_chk:")
    for n in range(8): g(f"v_xor_b32 v{72+n}, s33, v{41+4*n}\nv_xor_b32 v{80+n}, s33, v{43+4*n}")
    for n in range(8): g(f"v_or_b32 v{72+n}, v{72+n}, v{80+n}")
    for n in range(8): g(f"v_cmp_ne_u32 s[{48+2*n}:{49+2*n}], 0, v{72+n}")
    g("s_mov_b32 s42, 0")
    for n in range(8): g(f"s_cmp_lg_u64 s[{62-2*n}:{63-2*n}], 0\ns_addc_u32 s42, s42, s42")
    g("L_hint:")
    g(f"""v_cmp_ne_u32 s[48:49], s33, v33
    v_cmp_ne_u32 vcc, s33, v35
    s_or_b64 vcc, vcc, s[48:49]
    s_bcnt1_i32_b64 s43, vcc
    s_or_b32 s38, s43, s42
    s_cbranch_scc0 L_got
    s_sub_u32 s41, s41, 1
    s_cbranch_scc1 L_got
    s_cmp_le_u32 s43, {8*o.get('thr',2)}
    s_cbranch_scc1 L_rnd
    s_sleep {o.get('sl_ml',4)}
    buffer_load_dwordx4 v[32:35], v36, s[12:15], s75 offen sc1
    s_waitcnt vmcnt(0)
    s_branch L_hint
    L_rnd:""")
    rnd(True)
    g("s_waitcnt vmcnt(0)\ns_branch L_chk\nL_got:")
    g.ts(5)
    g(f"""v_max_f32_dpp v12, v32, v32 quad_perm:[1,0,3,2] {DPPA}
    s_nop 1
    v_max_f32_dpp v12, v12, v12 quad_perm:[2,3,0,1] {DPPA}
    v_sub_f32 v12, v32, v12
    v_mul_f32 v12, s35, v12
    v_exp_f32 v12, v12
    s_nop 0
    v_mul_f32 v13, v12, v34
    s_nop 1
    v_add_f32_dpp v13, v13, v13 quad_perm:[1,0,3,2] {DPPA}
    s_nop 1
    v_add_f32_dpp v13, v13, v13 quad_perm:[2,3,0,1] {DPPA}
    v_rcp_f32 v13, v13
    s_nop 0
    v_mul_f32 v12, v12, v13
    s_nop 0""")
    for n in range(8): g(f"v_readlane_b32 s{48+n}, v12, {n}")
    g("s_nop 1")
    for b in range(2):
        g(f"v_mul_f32 v{16+2*b}, s{48+4*b}, v{40+16*b}\nv_mul_f32 v{17+2*b}, s{48+4*b}, v{42+16*b}")
        for p in range(1,4): g(f"v_fmac_f32 v{16+2*b}, s{48+4*b+p}, v{40+16*b+4*p}\nv_fmac_f32 v{17+2*b}, s{48+4*b+p}, v{42+16*b+4*p}")
    g(f"""s_mul_i32 s38, s32, {2*AS}
    v_lshl_add_u32 v5, v1, 2, s38
    v_cvt_pk_bf16_f32 v16, v16, v17
    v_cvt_pk_bf16_f32 v18, v18, v19
    ds_write_b32 v5, v16 offset:{L_A}
    ds_write_b32 v5, v18 offset:{L_A+AS}
    s_waitcnt lgkmcnt(0)
    s_barrier
    L_send:""")
    g.ts(6); g.tsdump(1)
    g("s_endpgm")

XA, RW, BT, D0, BW = 8, 72, 104, 112, 136
import os
WF = os.environ.get("WF","nt")
def wq_setup(g, sr):
    srd(g, sr, 22, 448*8192)
    g(f"""s_lshr_b32 s73, s2, 5
    s_lshl_b32 s73, s73, 5
    s_and_b32 s38, s2, 7
    s_lshl_b32 s38, s38, 2
    s_add_u32 s73, s73, s38
    s_bfe_u32 s38, s2, 0x20003
    s_add_u32 s73, s73, s38
    s_lshl_b32 s38, s73, 5
    v_and_b32 v3, 1, v1
    v_lshl_add_u32 v3, v3, 4, s38
    v_lshrrev_b32 v2, 1, v1
    v_lshl_add_u32 v2, v2, 13, v3""")
def dma(g, sr, ns, lbase, off, base=None, fl=""):
    for n in ns:
        g(f"s_mov_b32 m0, {lbase+1024*n}")
        g(f"s_mov_b32 s40, {off(n)}" if base is None else f"s_add_u32 s40, s{base}, {off(n)}")
        g(f"buffer_load_dwordx4 v2, s[{sr}:{sr+3}], s40 offen {fl} lds")
def proj_mma(g, D, lbase):
    for s in range(14):
        for u in range(2): g(f"ds_read_b64_tr_b16 {r(BW+4*s+2*u,2)}, v64 offset:{lbase+1024*s+128*u}")
        if s==6 or s==13:
            g("s_waitcnt lgkmcnt(0)")
            for q in range(s-6,s+1): g(f"v_mfma_f32_16x16x32_bf16 {r(D,4)}, {r(XA+4*q,4)}, {r(BW+4*q,4)}, {'0' if q==0 else r(D,4)}")
def pairpack(g, D, o):
    g(f"""v_cndmask_b32 v{BT}, v{D}, v{D+2}, s[54:55]
    v_cndmask_b32 v{BT+1}, v{D+1}, v{D+3}, s[54:55]
    s_nop 1
    v_mov_b32_dpp v{BT+2}, v{BT} quad_perm:[1,0,3,2] {DPPA}
    v_mov_b32_dpp v{BT+3}, v{BT+1} quad_perm:[1,0,3,2] {DPPA}
    v_cndmask_b32 v{o+1}, v{BT+2}, v{BT+1}, s[56:57]
    v_cndmask_b32 v{o}, v{BT}, v{BT+3}, s[56:57]""")
def wslice_regs(g, lbase):
    for t in range(4):
        for c in range(4):
            for u in range(2): g(f"ds_read_b64_tr_b16 {r(BW+16*t+4*c+2*u,2)}, v65 offset:{lbase+4096*t+512*u+32*c}")
        g("s_waitcnt lgkmcnt(0)")
def wslice_mma_store(g, A, jobb):
    for t in range(4):
        for e in range(4): g(f"v_mfma_f32_16x16x32_bf16 {r(D0+4*e,4)}, {r(A+4*t,4)}, {r(BW+16*t+4*e,4)}, {'0' if t==0 else r(D0+4*e,4)}")
    for q in range(4): g(f"v_mov_b32 v{RW+4*q+1}, s33\nv_mov_b32 v{RW+4*q+3}, s33")
    for q in range(4):
        g(f"""v_cndmask_b32 v{RW+4*q}, v{D0+q}, v{D0+8+q}, s[54:55]
        v_cndmask_b32 v{RW+4*q+2}, v{D0+4+q}, v{D0+12+q}, s[54:55]
        s_add_u32 s40, s43, {q*28*jobb}
        buffer_store_dwordx4 {r(RW+4*q,4)}, v6, s[12:15], s40 offen sc1""")
def joboff(g, jobb):
    g(f"""v_and_b32 v6, 1, v5
    v_mul_u32_u24 v6, 112, v6
    v_and_b32 v7, 2, v5
    v_add_u32 v6, v6, v7
    v_lshrrev_b32 v7, 3, v4
    v_add_u32 v6, v6, v7
    v_mul_u32_u24 v6, {jobb}, v6
    v_and_b32 v7, 7, v4
    v_lshl_add_u32 v6, v7, 4, v6""")
def red8x2(g, v, t):
    g(f"s_nop 0\nv_add_f32_dpp v{v}, v{v}, v{v} row_ror:8 {DPPA}\nv_add_f32_dpp v{v+1}, v{v+1}, v{v+1} row_ror:8 {DPPA}")
    for sw in ("16","32"):
        g(f"""v_mov_b32 v{t}, v{v}
        v_mov_b32 v{t+1}, v{v+1}
        s_nop 0
        v_permlane{sw}_swap_b32 v{v}, v{t}
        v_permlane{sw}_swap_b32 v{v+1}, v{t+1}
        v_add_f32 v{v}, v{v}, v{t}
        v_add_f32 v{v+1}, v{v+1}, v{t+1}""")
def rbf2(g, v): g(f"v_cvt_pk_bf16_f32 v{v+1}, v{v}, v{v+1}\nv_lshlrev_b32 v{v}, 16, v{v+1}\nv_and_b32 v{v+1}, 0xffff0000, v{v+1}")
def div7(g, src): g(f"s_mul_i32 s39, s{src}, 9363\ns_lshr_b32 s39, s39, 16\ns_mul_i32 s40, s39, 7\ns_sub_u32 s38, s{src}, s40\ns_mul_i32 s42, s39, {128*896}\ns_lshl_b32 s40, s38, 7\ns_add_u32 s42, s42, s40")

def helper(g):
    o=g.o
    g("s_setprio 3")
    srd(g, 44, 16, 7168)
    X=PA
    g(f"""s_mul_i32 s38, s3, 1792
    v_lshl_add_u32 v{T0}, v1, 4, s38""")
    for k in range(8): g(f"v_mov_b32 v{X+k}, 0")
    g(f"""s_mov_b32 exec_hi, 0xffffff
    buffer_load_dwordx4 {r(X,4)}, v{T0}, s[44:47], 0 offen
    buffer_load_dwordx4 {r(X+4,4)}, v{T0}, s[44:47], 0 offen offset:896
    s_mov_b32 exec_hi, -1""")
    wq_setup(g, 4)
    g(f"s_lshl_b32 s38, s3, 10\ns_add_u32 m0, s38, {L_W0}\ns_lshl_b32 s38, s3, 18")
    for n in range(4):
        if n==3: g("s_cmp_ge_u32 s3, 2\ns_cbranch_scc1 L_wq3")
        g(f"buffer_load_dwordx4 v2, s[4:7], s38 offen {WF} lds\ns_add_u32 m0, m0, 4096\ns_add_u32 s38, s38, {128*8192}")
    g(f"""L_wq3:
    s_barrier
    s_mul_i32 s38, s3, {2*XNS}
    v_lshl_add_u32 v{T0+1}, v1, 4, s38""")
    g.ts(1)
    g(f"""v_and_b32 v4, 15, v1
    v_lshrrev_b32 v5, 4, v1
    s_mov_b32 s54, 0
    s_mov_b32 s55, -1
    s_mov_b32 s56, 0xaaaaaaaa
    s_mov_b32 s57, 0xaaaaaaaa
    v_lshlrev_b32 v64, 8, v5
    v_lshl_add_u32 v64, v4, 3, v64
    v_lshrrev_b32 v7, 2, v4
    v_lshlrev_b32 v65, 10, v5
    v_lshl_add_u32 v65, v7, 7, v65
    v_and_b32 v7, 3, v4
    v_lshl_add_u32 v65, v7, 3, v65
    v_and_b32 v7, 7, v4
    v_mul_u32_u24 v66, {XNS}, v7
    v_lshl_add_u32 v66, v5, 4, v66
    v_and_b32 v6, 1, v5
    v_lshlrev_b32 v6, 2, v6
    v_and_b32 v7, 2, v5
    v_add_u32 v6, v6, v7
    v_and_b32 v7, 1, v4
    v_add_u32 v67, v6, v7
    v_lshrrev_b32 v7, 1, v4
    v_lshlrev_b32 v68, 3, v7
    v_lshl_add_u32 v69, v67, 6, v68
    v_lshlrev_b32 v70, 4, v1
    s_lshl_b32 s38, s73, 9
    s_add_u32 s38, s38, {W_Q}
    s_bfe_u32 s39, s2, 0x30002
    s_lshl_b32 s39, s39, 14
    s_lshr_b32 s40, s2, 5
    s_lshl_b32 s40, s40, 6
    s_add_u32 s39, s39, s40
    s_add_u32 s39, s39, {W_Q}
    s_add_u32 s42, s39, 8192
    v_lshrrev_b32 v71, 2, v1
    v_lshlrev_b32 v71, 9, v71
    v_and_b32 v7, 3, v1
    v_lshl_add_u32 v71, v7, 4, v71
""")
    F=VQ; t=VQ+16
    def red64(v):
        for c in ("quad_perm:[1,0,3,2]","quad_perm:[2,3,0,1]","row_ror:4","row_ror:8"):
            g(f"s_nop 0\nv_add_f32_dpp v{v}, v{v}, v{v} {c} {DPPA}\nv_add_f32_dpp v{v+1}, v{v+1}, v{v+1} {c} {DPPA}")
        for sw in ("16","32"):
            g(f"""v_mov_b32 v{t+8}, v{v}
            v_mov_b32 v{t+9}, v{v+1}
            s_nop 0
            v_permlane{sw}_swap_b32 v{v}, v{t+8}
            v_permlane{sw}_swap_b32 v{v+1}, v{t+9}
            v_add_f32 v{v}, v{v}, v{t+8}
            v_add_f32 v{v+1}, v{v+1}, v{t+9}""")
        g(f"v_mul_f32 v{v}, {f2u(1/448):#x}, v{v}\nv_mul_f32 v{v+1}, {f2u(1/448):#x}, v{v+1}")
    def rb2(v): g(f"v_cvt_pk_bf16_f32 v{v+1}, v{v}, v{v+1}\nv_lshlrev_b32 v{v}, 16, v{v+1}\nv_and_b32 v{v+1}, 0xffff0000, v{v+1}")
    g(f"s_waitcnt vmcnt(3)")
    for n in range(8): g(f"v_lshlrev_b32 v{F+2*n}, 16, v{X+n}\nv_and_b32 v{F+2*n+1}, 0xffff0000, v{X+n}")
    g(f"v_add_f32 v{t}, v{F}, v{F+1}\nv_add_f32 v{t+1}, v{F+8}, v{F+9}")
    for k in range(2,8): g(f"v_add_f32 v{t}, v{t}, v{F+k}\nv_add_f32 v{t+1}, v{t+1}, v{F+8+k}")
    red64(t)
    g(f"v_mov_b32 v{t+2}, 0\nv_mov_b32 v{t+3}, 0\ns_mov_b32 exec_hi, 0xffffff")
    for k in range(16): g(f"v_sub_f32 v{t+4}, v{F+k}, v{t+(k>>3)}\nv_fmac_f32 v{t+2+(k>>3)}, v{t+4}, v{t+4}")
    g("s_mov_b32 exec_hi, -1\ns_nop 0")
    red64(t+2)
    rb2(t); rb2(t+2)
    g(f"v_add_f32 v{t+2}, {f2u(1e-5):#x}, v{t+2}\nv_add_f32 v{t+3}, {f2u(1e-5):#x}, v{t+3}"); rb2(t+2)
    g(f"v_sqrt_f32 v{t+2}, v{t+2}\nv_sqrt_f32 v{t+3}, v{t+3}\ns_nop 0"); rb2(t+2)
    g(f"v_rcp_f32 v{t+4}, v{t+2}\nv_rcp_f32 v{t+5}, v{t+3}")
    for k in range(16): g(f"v_sub_f32 v{F+k}, v{F+k}, v{t+(k>>3)}")
    for n in range(8): rb2(F+2*n)
    for k in range(16): g(f"v_mul_f32 v{t+6}, v{F+k}, v{t+4+(k>>3)}\nv_fma_f32 v{F+k}, -v{t+6}, v{t+2+(k>>3)}, v{F+k}\nv_fma_f32 v{F+k}, v{F+k}, v{t+4+(k>>3)}, v{t+6}")
    for n in range(8): g(f"v_cvt_pk_bf16_f32 v{X+n}, v{F+2*n}, v{F+2*n+1}")
    g(f"""s_mov_b32 exec_hi, 0xffffff
    ds_write_b128 v{T0+1}, {r(X,4)} offset:{L_XN}
    ds_write_b128 v{T0+1}, {r(X+4,4)} offset:{L_XN+XNS}
    s_mov_b32 exec_hi, -1
    s_waitcnt vmcnt(0)""")
    def bump(off): g(f"s_waitcnt vmcnt(0) lgkmcnt(0)\nv_mov_b32 v6, 0\nv_mov_b32 v7, 1\ns_mov_b64 exec, 1\nds_add_u32 v6, v7 offset:{L_CNT+off}\ns_mov_b64 exec, -1")
    def ldswait(off, cmp, val, sleep):
        l=g.lab("lw")
        g(f"v_mov_b32 v6, 0\n{l}:" + (f"\ns_sleep {sleep}" if sleep else "") + f"\nds_read_b32 v7, v6 offset:{L_CNT+off}\ns_waitcnt lgkmcnt(0)\nv_readfirstlane_b32 s40, v7\ns_cmp_{cmp}_u32 s40, {val}\ns_cbranch_scc1 {l}")
    bump(4)
    g("s_cmp_lg_u32 s3, 0\ns_cbranch_scc1 L_b1")
    ldswait(4, "lt", 4, 0)
    g.ts(2)
    for s in range(14): g(f"ds_read_b128 {r(XA+4*s,4)}, v66 offset:{L_XN+64*s}")
    proj_mma(g, D0, L_W0)
    g(f"v_mov_b32 v{RW+1}, s33\ns_nop 6")
    pairpack(g, D0, D0+4)
    g(f"v_cvt_pk_bf16_f32 v{RW}, v{D0+4}, v{D0+5}\nbuffer_store_dwordx2 {r(RW,2)}, v69, s[12:15], s38 offen sc1")
    g.ts(3)
    if o.get('pp'):
        def qp(k): g(f"buffer_load_dwordx4 {r(BW+8*k,4)}, v71, s[12:15], s39 offen sc1\nbuffer_load_dwordx4 {r(BW+8*k+4,4)}, v71, s[12:15], s42 offen sc1\ns_sleep {o['pp']}")
        NP=4
        for k in range(NP-1): qp(k)
        g(f"s_mov_b32 s41, {SPIN}\nL_qp:")
        for k in range(NP):
            qp((k+NP-1)%NP)
            g(f"s_waitcnt vmcnt({2*NP-2})")
            for x in range(8): g(f"v_mov_b32 v{RW+4+x}, v{BW+8*k+x}")
            tagchk(g,[RW+5,RW+7,RW+9,RW+11],BT); g("s_cbranch_vccz L_qok")
        g("s_sub_u32 s41, s41, 1\ns_cmp_lg_u32 s41, 0\ns_cbranch_scc1 L_qp\nL_qok:")
    else:
        l=spin_begin(g,"q")
        g(f"buffer_load_dwordx4 {r(RW+4,4)}, v71, s[12:15], s39 offen sc1\nbuffer_load_dwordx4 {r(RW+8,4)}, v71, s[12:15], s42 offen sc1\ns_waitcnt vmcnt(0)")
        tagchk(g,[RW+5,RW+7,RW+9,RW+11],BT); spin_end(g,l,0)
    g(f"""v_lshlrev_b32 v6, 3, v1
    v_add_u32 v6, {L_Q}, v6
    ds_write2_b32 v6, v{RW+4}, v{RW+6} offset0:0 offset1:1
    ds_write2_b32 v6, v{RW+8}, v{RW+10} offset0:128 offset1:129
    s_waitcnt lgkmcnt(0)
    L_b1:
    s_barrier""")
    g.ts(4)
    if o.get('noside'): g("s_branch L_hend")
    g("s_cmp_ge_u32 s2, 224\ns_cbranch_scc1 L_nowo")
    div7(g, 2)
    g(f"""v_lshrrev_b32 v2, 4, v1
    v_bfe_u32 v7, v1, 3, 1
    v_lshl_add_u32 v2, v2, 3, v7
    v_mul_u32_u24 v2, 896, v2
    v_and_b32 v7, 7, v1
    v_lshl_add_u32 v2, v7, 4, v2""")
    srd(g, 8, 24, 4096*896)
    g(f"s_mul_i32 s40, s3, {2*896}\ns_add_u32 s42, s42, s40\ns_lshl_b32 s40, s3, 12\ns_add_u32 m0, s40, {L_W1}\ns_nop 0")
    UV=UNIT[o.get('uv','m')]
    for n in range(4):
        g(f"s_mov_b32 s40, {(UV[1][n]-4)*32*896}\ns_bitcmp1_b32 s39, 0\ns_cselect_b32 s40, s40, {UV[0][n]*32*896}\ns_add_u32 s40, s40, s42")
        g(f"buffer_load_dwordx4 v2, s[8:11], s40 offen nt lds\ns_add_u32 m0, m0, 1024")
    g("L_nowo:")
    if o.get('noj23'): g("s_mov_b32 s58, 99")
    elif o.get('claim'):
        g("s_cmp_lg_u32 s3, 0\ns_cbranch_scc1 L_getjob")
        srd(g, 60, 68, 256)
        ldswait(0, "lt", o['claim'], 16)
        g(f"""v_mov_b32 v7, 1
        s_mov_b64 exec, 1
        buffer_atomic_add v7, v6, s[60:63], 0 offen sc0 sc1
        s_waitcnt vmcnt(0)
        v_and_b32 v7, 0xff, v7
        v_add_u32 v7, 1, v7
        ds_write_b32 v6, v7 offset:{L_CNT+8}
        s_mov_b64 exec, -1
        L_getjob:""")
        ldswait(8, "eq", 0, 16)
        g("s_sub_u32 s58, s40, 1")
    else:
        g("s_and_b32 s40, s2, 3\ns_bfe_u32 s58, s2, 0x20003\ns_cmp_lg_u32 s40, s58\ns_cselect_b32 s40, 99, 0\ns_lshr_b32 s58, s2, 2\ns_add_u32 s58, s58, s40")
    g(f"""s_cmp_ge_u32 s58, 42
    s_cbranch_scc1 L_nojob
    s_lshl_b32 s59, s58, 7
    s_add_u32 s59, s59, {W_F}
    s_cmp_ge_u32 s58, 28
    s_cbranch_scc1 L_j3
    v_lshrrev_b32 v2, 3, v1
    v_mul_u32_u24 v2, 3584, v2
    v_and_b32 v7, 7, v1
    v_lshl_add_u32 v2, v7, 4, v2
    s_lshl_b32 s42, s58, 7""")
    def join():
        bump(12)
        g("s_cmp_lg_u32 s3, 0\ns_cbranch_scc1 L_exit")
        ldswait(12, "lt", 4, 4)
    def wpass(D, first):
        g("s_waitcnt vmcnt(0)")
        for t in range(14):
            B=BW+16*(t&1)
            for c in range(4):
                for u in range(2): g(f"ds_read_b64_tr_b16 {r(B+4*c+2*u,2)}, v71 offset:{4096*t+512*u+32*c}")
            g("s_waitcnt lgkmcnt(0)")
            for c in range(4): g(f"v_mfma_f32_16x16x32_bf16 {r(D+4*c,4)}, {r(XA+4*t,4)}, {r(B+4*c,4)}, {'0' if (t==0 and first) else r(D+4*c,4)}")
    def dmaloop(sr, lb, n_out, step_out, step_in):
        l=g.lab("dma")
        g(f"s_lshl_b32 s40, s3, 11\ns_add_u32 m0, s40, {lb}\ns_mul_i32 s40, s3, {2*step_in}\ns_add_u32 s40, s40, s42\ns_mov_b32 s41, {n_out}\n{l}:")
        g(f"""buffer_load_dwordx4 v2, s[{sr}:{sr+3}], s40 offen nt lds
        s_add_u32 m0, m0, 1024
        s_add_u32 s40, s40, {step_in}
        buffer_load_dwordx4 v2, s[{sr}:{sr+3}], s40 offen nt lds
        s_add_u32 m0, m0, 7168
        s_add_u32 s40, s40, {step_out-step_in}
        s_sub_u32 s41, s41, 1
        s_cmp_lg_u32 s41, 0
        s_cbranch_scc1 {l}""")
    D1=BW+32
    srd(g, 4, 28, 448*3584); srd(g, 44, 30, 448*3584)
    dmaloop(4, L_W0, 7, 64*3584, 8*3584); dmaloop(44, L_W0+57344, 7, 64*3584, 8*3584); join()
    g(f"v_add_u32 v71, {L_W0}, v65"); wpass(D0, True)
    g(f"v_add_u32 v71, {L_W0+57344}, v65"); wpass(D1, True)
    g("s_nop 7")
    for c in range(4):
        pairpack(g, D0+4*c, RW+4); pairpack(g, D1+4*c, RW+6); rbf2(g, RW+4); rbf2(g, RW+6)
        g(f"v_mul_f32 v{RW+4}, v{RW+4}, v{RW+6}\nv_mul_f32 v{RW+5}, v{RW+5}, v{RW+7}\nv_cvt_pk_bf16_f32 v{RW+c}, v{RW+4}, v{RW+5}")
    g(f"""v_mul_u32_u24 v69, 3584, v67
    v_lshl_add_u32 v69, v68, 1, v69
    s_lshl_b32 s38, s58, 7
    s_add_u32 s38, s38, {W_H}
    buffer_store_dwordx4 {r(RW,4)}, v69, s[12:15], s38 offen sc1
    s_branch L_flag
    L_j3:
    s_sub_u32 s38, s58, 28
    s_cmp_ge_u32 s38, 7
    s_cselect_b32 s39, 1, 0          ; K half
    s_mul_i32 s40, s39, 7
    s_sub_u32 s40, s38, s40          ; ns
    s_lshl_b32 s40, s40, 7
    s_mul_i32 s42, s39, {896*896}
    s_add_u32 s42, s42, s40
    v_lshrrev_b32 v2, 4, v1
    v_bfe_u32 v7, v1, 3, 1
    v_lshl_add_u32 v2, v2, 4, v7
    v_mul_u32_u24 v2, 896, v2
    v_and_b32 v7, 7, v1
    v_lshl_add_u32 v2, v7, 4, v2
    v_mul_u32_u24 v69, 3584, v7
    v_lshl_add_u32 v69, v5, 4, v69
    v_add_u32 v71, {L_W0}, v65
    s_mul_i32 s43, s39, 1792
    s_add_u32 s52, s43, {W_F}
    s_add_u32 s43, s43, {W_H}
""")
    srd(g, 4, 64, 1792*896); dmaloop(4, L_W0, 14, 64*896, 2*896); join()
    g("v_min_u32 v6, 13, v1\nv_lshlrev_b32 v6, 7, v6")
    l=spin_begin(g,"hf")
    g(f"buffer_load_dword v{RW}, v6, s[12:15], s52 offen sc1\ns_waitcnt vmcnt(0)")
    tagchk(g,[RW],BT); spin_end(g,l,64)
    for t in range(14): g(f"buffer_load_dwordx4 {r(XA+4*t,4)}, v69, s[12:15], s43 offen offset:{64*t} sc1")
    wpass(D0, True)
    g(f"v_add_u32 v71, {L_W0+57344}, v65\ns_nop 7")
    for t in range(14): g(f"buffer_load_dwordx4 {r(XA+4*t,4)}, v69, s[12:15], s43 offen offset:{896+64*t} sc1")
    wpass(D0, False)
    g(f"""v_and_b32 v6, 1, v5
    v_lshlrev_b32 v6, 2, v6
    v_and_b32 v7, 2, v5
    v_add_u32 v6, v6, v7
    v_lshlrev_b32 v6, 8, v6
    v_lshl_add_u32 v6, v4, 4, v6
    s_lshl_b32 s38, s38, 11
    s_add_u32 s38, s38, {W_Y}""")
    for q in range(2):
        for c in range(4): g(f"v_cndmask_b32 v{RW+4*q+c}, v{D0+4*c+q}, v{D0+4*c+2+q}, s[54:55]")
        g(f"buffer_store_dwordx4 {r(RW+4*q,4)}, v6, s[12:15], s38 offen offset:{256*q} sc1")
    g(f"""L_flag:
    s_waitcnt vmcnt(0)
    v_mov_b32 v6, s33
    s_mov_b64 exec, 1
    buffer_store_dword v6, v70, s[12:15], s59 offen sc1
    s_mov_b64 exec, -1
    s_branch L_noj3
    L_nojob:""")
    join()
    g(f"""L_noj3:
    s_cmp_ge_u32 s2, 224
    s_cbranch_scc1 L_hend""")
    div7(g, 2)
    g("v_and_b32 v7, 7, v1")
    g(f"""s_lshl_b32 s43, s38, 14
    s_lshl_b32 s40, s39, 7
    s_add_u32 s43, s43, s40
    s_add_u32 s43, s43, {W_S}
    s_lshr_b32 s38, s2, 1
    s_lshl_b32 s38, s38, 6
    s_and_b32 s40, s2, 1
    s_lshl_b32 s40, s40, 4
    s_add_u32 s38, s38, s40
    v_lshl_add_u32 v36, v7, 1, s38""")
    srd(g, 44, 16, 7168); srd(g, 48, 66, 7168)
    g(f"buffer_load_ushort v34, v36, s[44:47], 0 offen\nbuffer_load_ushort v35, v36, s[44:47], 0 offen offset:32\ns_waitcnt vmcnt(0)")
    wslice_regs(g, L_W1); joboff(g, 4096)
    g(f"""v_lshlrev_b32 v34, 16, v34
    v_lshlrev_b32 v35, 16, v35
    v_mul_u32_u24 v38, {AS}, v7
    v_lshl_add_u32 v38, v5, 4, v38
    s_mul_i32 s38, s2, 2341
    s_lshr_b32 s38, s38, 16          ; b = w/28
    s_mul_i32 s39, s38, 28
    s_sub_u32 s39, s2, s39
    s_lshr_b32 s40, s39, 2           ; ns
    s_lshl_b32 s52, s40, 7
    s_add_u32 s52, s52, {W_F+28*128}
    s_lshl_b32 s40, s40, 11
    s_lshl_b32 s38, s38, 8
    s_add_u32 s38, s38, s40
    s_and_b32 s40, s39, 1
    s_lshl_b32 s40, s40, 7
    s_add_u32 s38, s38, s40
    s_and_b32 s40, s39, 2
    s_lshl_b32 s40, s40, 2
    s_add_u32 s38, s38, s40
    s_add_u32 s38, s38, {W_Y}
    v_bfe_u32 v39, v1, 3, 1
    v_mul_u32_u24 v37, 896, v39
    v_mul_u32_u24 v39, 14336, v39
    v_lshl_add_u32 v39, v7, 4, v39""")
    g.ts(5)
    if o.get('notail'): g("s_branch L_hend")
    g("v_mov_b32 v31, v6"); ldswait(0, "lt", o.get('ywait',236), 16); g("v_mov_b32 v6, v31")
    l=spin_begin(g,"y")
    g(f"buffer_load_dword v{RW}, v37, s[12:15], s52 offen sc1\ns_waitcnt vmcnt(0)")
    tagchk(g,[RW],BT)
    if o.get('noj23'): g("s_mov_b64 vcc, 0")
    spin_end(g,l,24)
    g(f"""buffer_load_dwordx2 v[32:33], v39, s[12:15], s38 offen sc1
    s_waitcnt vmcnt(0)
    v_add_f32_dpp v32, v32, v32 row_ror:8 {DPPA}
    v_add_f32_dpp v33, v33, v33 row_ror:8 {DPPA}""")
    rbf2(g,32)
    for v in (32,33):
        g(f"""v_mul_f32 v{BT}, {f2u(-1.4426950408889634):#x}, v{v}
        v_exp_f32 v{BT}, v{BT}
        s_nop 0
        v_add_f32 v{BT}, 1.0, v{BT}
        v_rcp_f32 v{BT}, v{BT}
        s_nop 0
        v_mul_f32 v{v}, v{v}, v{BT}""")
    rbf2(g,32)
    g(f"s_lshl_b32 s38, s2, 12\ns_add_u32 s38, s38, {W_S}\ns_barrier\ns_barrier")
    for t in range(4): g(f"ds_read_b128 {r(XA+4*t,4)}, v38 offset:{L_A+64*t}")
    g("s_waitcnt lgkmcnt(0)")
    wslice_mma_store(g, XA, 4096)
    g.ts(6)
    R2=RW+16
    l=spin_begin(g,"s")
    for n in range(4): g(f"buffer_load_dwordx4 {r(R2+4*n,4)}, v70, s[12:15], s38 offen offset:{1024*n} sc1")
    g("s_waitcnt vmcnt(0)")
    tagchk(g,[R2+1+2*k for k in range(8)],BT); spin_end(g,l,o.get('sl_s',1))
    g(f"""v_add_f32 v{R2}, v{R2}, v{R2+4}
    v_add_f32 v{R2+2}, v{R2+2}, v{R2+6}
    v_add_f32 v{R2+8}, v{R2+8}, v{R2+12}
    v_add_f32 v{R2+10}, v{R2+10}, v{R2+14}
    v_add_f32 v30, v{R2}, v{R2+8}
    v_add_f32 v31, v{R2+2}, v{R2+10}""")
    red8x2(g,30,BT); rbf2(g,30)
    g("v_mul_f32 v30, v30, v32\nv_mul_f32 v31, v31, v33"); rbf2(g,30)
    g(f"""v_add_f32 v30, v30, v34
    v_add_f32 v31, v31, v35
    v_cvt_pk_bf16_f32 v31, v30, v31
    s_mov_b64 exec, 0xff
    buffer_store_short v31, v36, s[48:51], 0 offen
    buffer_store_short_d16_hi v31, v36, s[48:51], 0 offen offset:32
    s_cmp_lg_u32 s2, 0
    s_cbranch_scc1 L_hend
    s_mov_b64 exec, 1
    v_mov_b32 v30, s33
    buffer_store_dword v30, v70, s[12:15], 0 offen sc1
    L_hend:""")
    if o.get('hold'): g(f"L_hold:\ns_memrealtime s[94:95]\ns_waitcnt lgkmcnt(0)\ns_sub_u32 s40, s94, s80\ns_cmp_lt_u32 s40, {o['hold']}\ns_cbranch_scc1 L_hold")
    g.ts(7); g.tsdump()
    g("s_endpgm")

def build(opt):
    g=G(opt)
    hdr=open("cdna_kernels/"+NAME+".s.ref").read().split("; Override launch")[0]
    g.L.append(hdr+f"; @launch grid=(256,1,1) block=(512,1,1) lds={LDS}")
    g.L.append(f'.amdgcn_target "amdgcn-amd-amdhsa--gfx950"\n.text\n.globl {NAME}_kernel\n.p2align 8\n.type {NAME}_kernel,@function\n{NAME}_kernel:')
    g.ts(0)
    g(f"""s_cmp_ge_u32 s2, 256
    s_cbranch_scc1 L_exit
    s_load_dwordx16 s[16:31], s[0:1], 0
    s_load_dwordx8 s[64:71], s[0:1], 64
    v_lshrrev_b32 v2, 6, v0
    v_and_b32 v1, 63, v0
    v_mov_b32 v6, 0
    v_mov_b32 v8, 0
    v_mov_b32 v9, 0
    v_mov_b32 v10, 0
    v_mov_b32 v11, 0
    ds_write_b128 v6, v[8:11] offset:{L_CNT}
    v_readfirstlane_b32 s3, v2
    s_waitcnt lgkmcnt(0)
    s_load_dword s72, s[70:71], 0""")
    srd(g, 12, 70, W_END)
    g("s_cmp_lt_u32 s3, 4\ns_cbranch_scc1 L_helper")
    mark=len(g.L); stream(g)
    g("L_helper:"); mark2=len(g.L); helper(g)
    for m in (mark2, mark):
        k=next(i for i in range(m,len(g.L)) if g.L[i].strip()=="s_waitcnt lgkmcnt(0)")
        g.L.insert(k+1,"  s_add_u32 s33, s72, 0x9e3779b9")
    g("L_exit:\ns_endpgm")
    g.L.append(f""".section .rodata,"a"
.p2align 6
.amdhsa_kernel {NAME}_kernel
  .amdhsa_next_free_vgpr 232
  .amdhsa_next_free_sgpr 102
  .amdhsa_accum_offset 232
  .amdhsa_group_segment_fixed_size 0
  .amdhsa_kernarg_size 96
  .amdhsa_user_sgpr_count 2
  .amdhsa_user_sgpr_kernarg_segment_ptr 1
  .amdhsa_system_sgpr_workgroup_id_x 1
.end_amdhsa_kernel""")
    return "\n".join(g.L)+"\n"

if __name__=="__main__":
    opt=eval(sys.argv[2]) if len(sys.argv)>2 else {}
    open(sys.argv[1],"w").write(build(opt))
```
